```python
import torch

def _softmax(x, axis=-1):
    return torch.softmax(x, dim=axis)
def _gelu(x):
    return torch.nn.functional.gelu(x, approximate="tanh")
def _silu(x):
    return torch.nn.functional.silu(x)
def _sigmoid(x):
    return torch.sigmoid(x)
def _layernorm(x, axis=-1, eps=1e-5):
    m = x.mean(dim=axis, keepdim=True)
    v = x.var(dim=axis, keepdim=True, unbiased=False)
    return (x - m) / torch.sqrt(v + eps)
def _scatter_add(tgt, idx, src, axis=0):
    return tgt.clone().index_add_(axis, idx, src)
def _segment_sum(src, seg, n):
    out = torch.zeros((n,) + src.shape[1:], dtype=src.dtype)
    return out.index_add_(0, seg, src)
def _pad(x, pw):
    flat = tuple(v for pair in reversed(pw) for v in pair)
    return torch.nn.functional.pad(x, flat)

kernel_name = 'concat_heads__gqa_block_cached__gqa_block_cached__near_ridge'

def setup_inputs():

    _w = (lambda a: (lambda t: t.to(torch.bfloat16) if t.is_floating_point() else t)(torch.as_tensor(a)))
    def _A_setup():
        B, Sq, D = 16, 144, 448
        Hq, Hkv, Sk, Dh = 16, 8, 1024, 256
        assert Hq % Hkv == 0, (Hq, Hkv)
        return {
            "x": _w((lambda *s: torch.randn(*s, dtype=torch.bfloat16) * 0.8)(B, Sq, D)),
            "k_cache": _w((lambda *s: torch.randn(*s, dtype=torch.bfloat16) * 0.8)(B, Hkv, Sk, Dh)),
            "v_cache": _w((lambda *s: torch.randn(*s, dtype=torch.bfloat16) * 0.05)(B, Hkv, Sk, Dh)),
            "wq": _w((lambda *s: torch.randn(*s, dtype=torch.bfloat16) * 0.8)(D, Hq * Dh) * (D ** -0.5)),
            "wo": _w((lambda *s: torch.randn(*s, dtype=torch.bfloat16) * 0.05)(Hq * Dh, D) * ((Hq * Dh) ** -0.5)),
        }
    _A_in = _A_setup()

    def _B_setup():
        B, Sq, D = 16, 144, 448
        Hq, Hkv, Sk, Dh = 16, 8, 1024, 256
        assert Hq % Hkv == 0, (Hq, Hkv)
        return {
            "x": _w((lambda *s: torch.randn(*s, dtype=torch.bfloat16) * 0.8)(B, Sq, D)),
            "k_cache": _w((lambda *s: torch.randn(*s, dtype=torch.bfloat16) * 0.8)(B, Hkv, Sk, Dh)),
            "v_cache": _w((lambda *s: torch.randn(*s, dtype=torch.bfloat16) * 0.05)(B, Hkv, Sk, Dh)),
            "wq": _w((lambda *s: torch.randn(*s, dtype=torch.bfloat16) * 0.8)(D, Hq * Dh) * (D ** -0.5)),
            "wo": _w((lambda *s: torch.randn(*s, dtype=torch.bfloat16) * 0.05)(Hq * Dh, D) * ((Hq * Dh) ** -0.5)),
        }
    _B_in = _B_setup()

    return {
        "A_x": _A_in["x"],
        "A_k_cache": _A_in["k_cache"],
        "A_v_cache": _A_in["v_cache"],
        "A_wq": _A_in["wq"],
        "A_wo": _A_in["wo"],
        "B_x": _B_in["x"],
        "B_k_cache": _B_in["k_cache"],
        "B_v_cache": _B_in["v_cache"],
        "B_wq": _B_in["wq"],
        "B_wo": _B_in["wo"],
    }

def reference(A_x, A_k_cache, A_v_cache, A_wq, A_wo, B_x, B_k_cache, B_v_cache, B_wq, B_wo):
    def _A_ref(x, k_cache, v_cache, wq, wo):
        B, Sq, D = x.shape
        Hq, Dh = 16, 256
        Hkv = k_cache.shape[1]
        rep = Hq // Hkv
        q = (lambda x, *d: x.permute(*d))((x @ wq).reshape(B, Sq, Hq, Dh), 0, 2, 1, 3)
        k = (lambda x, n, axis: torch.repeat_interleave(x, n, dim=axis))(k_cache, rep, axis=1)
        v = (lambda x, n, axis: torch.repeat_interleave(x, n, dim=axis))(v_cache, rep, axis=1)
        scores = torch.einsum("bhqd,bhkd->bhqk", q, k) * (Dh ** -0.5)
        p = _softmax(scores, axis=-1)
        o = torch.einsum("bhqk,bhkd->bhqd", p, v)
        return (lambda x, *d: x.permute(*d))(o, 0, 2, 1, 3).reshape(B, Sq, Hq * Dh) @ wo

    def _B_ref(x, k_cache, v_cache, wq, wo):
        B, Sq, D = x.shape
        Hq, Dh = 16, 256
        Hkv = k_cache.shape[1]
        rep = Hq // Hkv
        q = (lambda x, *d: x.permute(*d))((x @ wq).reshape(B, Sq, Hq, Dh), 0, 2, 1, 3)
        k = (lambda x, n, axis: torch.repeat_interleave(x, n, dim=axis))(k_cache, rep, axis=1)
        v = (lambda x, n, axis: torch.repeat_interleave(x, n, dim=axis))(v_cache, rep, axis=1)
        scores = torch.einsum("bhqd,bhkd->bhqk", q, k) * (Dh ** -0.5)
        p = _softmax(scores, axis=-1)
        o = torch.einsum("bhqk,bhkd->bhqd", p, v)
        return (lambda x, *d: x.permute(*d))(o, 0, 2, 1, 3).reshape(B, Sq, Hq * Dh) @ wo

    a = _A_ref(A_x, A_k_cache, A_v_cache, A_wq, A_wo)
    b = _B_ref(B_x, B_k_cache, B_v_cache, B_wq, B_wo)
    return torch.concatenate([a, b], axis=-1)
```

```python
import re

class Prog:
    def __init__(self):
        self.lines = []
    def __call__(self, s):
        for l in s.split('\n'):
            l = l.strip()
            if l: self.lines.append(l)
    def label(self, name): self.lines.append(name + ':')
    def text(self): return '\n'.join(self.lines) + '\n'

RE_REG = re.compile(r'(?<![\w.])([vas])(\d+)\b|(?<![\w.])([vas])\[(\d+):(\d+)\]')
def regs_of(tok):
    tok = tok.strip()
    m = re.fullmatch(r'-?\|?([vas])(\d+)\|?', tok)
    if m: return [(m.group(1), int(m.group(2)))]
    m = re.fullmatch(r'([vas])\[(\d+):(\d+)\]', tok)
    if m: return [(m.group(1), i) for i in range(int(m.group(2)), int(m.group(3)) + 1)]
    if tok == 'vcc': return [('s', 106), ('s', 107)]
    if tok == 'm0': return [('s', 124)]
    if tok == 'exec': return [('s', 126), ('s', 127)]
    return []

TRANS = ('v_exp_f32', 'v_log_f32', 'v_rcp_f32', 'v_rsq_f32', 'v_sqrt_f32')

class Ins:
    __slots__ = ('op', 'ops', 'defs', 'uses', 'kind', 'text', 'srcc', 'nop', 'ab')
    def __init__(self, text):
        self.text = text
        t = text.split(';')[0].strip()
        parts = t.split(None, 1)
        self.op = parts[0]
        rest = parts[1] if len(parts) > 1 else ''
        ops = [o.strip() for o in rest.split(',')] if rest else []
        if ops:
            last = ops[-1].split()
            mods = last[1:]
            ops[-1] = last[0] if last else ''
        self.ops = ops
        self.defs = []; self.uses = []; self.srcc = []; self.ab = []; self.nop = 1
        op = self.op
        if op.startswith('v_mfma'):
            self.kind = 'mfma'
            self.defs = regs_of(ops[0]); self.ab = regs_of(ops[1]) + regs_of(ops[2]); self.srcc = regs_of(ops[3])
            self.uses = self.ab + self.srcc
        elif op.startswith('ds_read') :
            self.kind = 'dsr'; self.defs = regs_of(ops[0]); self.uses = regs_of(ops[1])
        elif op.startswith('ds_write') or op.startswith('ds_add') or op.startswith('ds_max'):
            self.kind = 'dsw'; self.uses = [r for o in ops for r in regs_of(o)]
        elif op.startswith('buffer_load') or op.startswith('global_load'):
            if ' lds' in t:
                self.kind = 'dma'; self.uses = [r for o in ops for r in regs_of(o)] + [('s', 124)]
            else:
                self.kind = 'vld'; self.defs = regs_of(ops[0]); self.uses = [r for o in ops[1:] for r in regs_of(o)]
        elif op.startswith('buffer_store') or op.startswith('global_store') or op.startswith('buffer_atomic') or op.startswith('global_atomic'):
            self.kind = 'vst'; self.uses = [r for o in ops for r in regs_of(o)]
        elif op == 's_nop':
            self.kind = 'nop'; self.nop = int(ops[0], 0) + 1
        elif op == 's_waitcnt':
            self.kind = 'wait'
        elif op in ('s_barrier', 's_endpgm', 's_setprio') or op.startswith('s_branch') or op.startswith('s_cbranch'):
            self.kind = 'ctl'
        elif op.startswith('s_'):
            self.kind = 'salu'
            if op.startswith('s_cmp') or op.startswith('s_bitcmp'):
                self.uses = [r for o in ops for r in regs_of(o)]
            else:
                self.defs = regs_of(ops[0]); self.uses = [r for o in ops[1:] for r in regs_of(o)]
        elif op.startswith('v_'):
            self.kind = 'valu'
            if op.startswith('v_cmp'):
                self.defs = regs_of(ops[0]); self.uses = [r for o in ops[1:] for r in regs_of(o)]
            elif op.startswith('v_permlane') and 'swap' in op:
                self.defs = regs_of(ops[0]) + regs_of(ops[1]); self.uses = list(self.defs)
            elif op in ('v_readfirstlane_b32', 'v_readlane_b32'):
                self.defs = regs_of(ops[0]); self.uses = [r for o in ops[1:] for r in regs_of(o)]
            else:
                self.defs = regs_of(ops[0]); self.uses = [r for o in ops[1:] for r in regs_of(o)]
                if op.startswith('v_fmac') or op.startswith('v_cndmask') and len(ops) == 3:
                    self.uses += self.defs if op.startswith('v_fmac') else [('s',106),('s',107)]
                if op.startswith('v_cndmask') and 'vcc' in t: self.uses += [('s',106),('s',107)]
        else:
            raise ValueError('unknown op ' + text)

def mfma_passes(op):
    if '16x16x32' in op: return 4
    if '32x32x16' in op: return 8
    raise ValueError(op)

def check_hazards(lines, fix=True, verbose=False):
    out = []
    hist = []
    pos = 0
    nfix = 0
    for l in lines:
        if l.endswith(':') or l.startswith('.'):
            out.append(l); continue
        I = Ins(l)
        need = 0
        why = None
        for (P, ppos) in reversed(hist):
            dist = pos - ppos - P.nop
            dist = pos - (ppos + P.nop)
            if dist >= 20: break
            req = 0
            pd = set(P.defs)
            if P.kind == 'valu':
                pv = {r for r in pd if r[0] in 'va'}
                ps = {r for r in pd if r[0] == 's'}
                if I.kind == 'mfma' and pv & set(I.uses): req = max(req, 2)
                if P.op in TRANS and I.kind == 'valu' and I.op not in TRANS and pv & set(I.uses): req = max(req, 1)
                if P.op in TRANS and I.kind in ('valu',) and I.op in TRANS and pv & set(I.uses): req = max(req, 1)
                if I.op.startswith('v_permlane') and pv & set(I.uses): req = max(req, 2)
                if I.op in ('v_readfirstlane_b32', 'v_readlane_b32') and pv & set(I.uses): req = max(req, 1)
                if ps:
                    if I.kind in ('vld', 'vst', 'dma') and ps & set(I.uses): req = max(req, 5)
                    if I.kind == 'valu' and ps & set(I.uses): req = max(req, 2)
                    if I.kind == 'salu' and ps & set(I.uses): req = max(req, 2)
            if P.kind == 'mfma':
                n = mfma_passes(P.op)
                full = {4: 8, 8: 12}[n]
                if I.kind == 'mfma':
                    if pd & set(I.ab): req = max(req, full)
                    if pd & set(I.srcc):
                        if not (I.srcc == P.defs and mfma_passes(I.op) == n): req = max(req, {4: 6, 8: 10}[n])
                    if pd & set(I.defs) and not (pd & set(I.srcc)): req = max(req, 0)
                elif I.kind in ('valu', 'dsw', 'vst', 'dsr', 'vld', 'dma'):
                    if pd & (set(I.uses) | set(I.defs)): req = max(req, full)
                if I.kind == 'valu' and set(P.srcc) & set(I.defs): req = max(req, {4: 3, 8: 7}[n])
            if P.kind == 'salu' and ('s', 124) in pd and I.kind == 'dma': req = max(req, 1)
            if P.kind == 'vst' and ('x4' in P.op or 'x3' in P.op) and I.kind in ('valu',):
                data = set(regs_of(P.ops[0])) if P.op.startswith('buffer') else set(regs_of(P.ops[1]))
                if data & set(I.defs): req = max(req, 2)
            if req > dist and req - dist > need:
                need = req - dist; why = (P.text, I.text, req, dist)
        if need > 0:
            if not fix: raise AssertionError(f'hazard {why}')
            nfix += 1
            if verbose: print('hazard fix', why)
            k = need
            while k > 0:
                c = min(k, 16)
                nop = Ins(f's_nop {c-1}')
                out.append(nop.text); hist.append((nop, pos)); pos += c; k -= c
        out.append(l); hist.append((I, pos)); pos += I.nop
        if len(hist) > 40: hist = hist[-40:]
    return out, nfix

def check_waits(lines):
    lg = []
    vm = []
    for idx, l in enumerate(lines):
        if l.endswith(':') or l.startswith('.'): continue
        I = Ins(l)
        if I.kind == 'wait':
            m = re.search(r'lgkmcnt\((\d+)\)', l)
            if m:
                n = int(m.group(1))
                if len(lg) > n: lg = lg[len(lg) - n:] if n > 0 else []
            m = re.search(r'vmcnt\((\d+)\)', l)
            if m:
                n = int(m.group(1))
                if len(vm) > n: vm = vm[len(vm) - n:] if n > 0 else []
            continue
        touched = set(I.uses) | set(I.defs)
        for q, name in ((lg, 'lgkm'), (vm, 'vm')):
            for d, txt in q:
                if d & touched:
                    raise AssertionError(f'line {idx}: "{l}" touches regs of outstanding {name} op "{txt}"')
        if I.kind in ('dsr', 'dsw'): lg.append((set(I.defs), l))
        elif I.op.startswith('s_load') or I.op.startswith('s_memtime'): lg.append((set(I.defs), l))
        elif I.kind in ('vld', 'vst', 'dma'): vm.append((set(I.defs), l))
        if len(lg) > 15 and any(d for d,_ in lg[:len(lg)-15]):
            pass
    return True
```

```python
class Frag:
    def __init__(s, kind, addr, imm, pool=None, regs=None, imm2=None, addr2=None, acc=False):
        s.kind = kind; s.addr = addr; s.imm = imm; s.pool = pool; s.regs = regs
        s.imm2 = imm2; s.addr2 = addr2; s.acc = acc
    def instrs(s):
        r = s.regs; f = 'a' if s.acc else 'v'
        if s.kind == 'b128':
            return [f'ds_read_b128 {f}[{r}:{r+3}], v{s.addr} offset:{s.imm}']
        if s.kind == 'tr':
            a2 = s.addr2 if s.addr2 is not None else s.addr
            return [f'ds_read_b64_tr_b16 {f}[{r}:{r+1}], v{s.addr} offset:{s.imm}',
                    f'ds_read_b64_tr_b16 {f}[{r+2}:{r+3}], v{a2} offset:{s.imm2}']
        raise ValueError

class Item:
    def __init__(s, frags, mf, nm, tag=None, hold=None):
        s.frags = frags
        s.mf = mf
        s.nm = nm
        s.tag = tag
        s.hold = hold or []

class Task:
    def __init__(s, text, ready=0, due=10**9, cost=None, sep=False):
        s.text = text; s.ready = ready; s.due = due; s.sep = sep
        if cost is None:
            cost = 2 if text.startswith('v_exp') or text.startswith('v_rcp') else 1
            cost = cost * 1
        s.cost = cost

def mstarts(items):
    st = []; c = 0
    for it in items: st.append(c); c += it.nm
    return st, c

def cost_of(t): return 2 if (t.startswith('v_exp') or t.startswith('v_rcp')) else 1

def schedule(P, items, queues, entry=(), exitf=(), budget=2, look=6, age=7, final=True, stats=None, minlead=0):
    n = len(items)
    for ii, it in enumerate(items):
        for f in it.frags: f.first = ii; f.last = ii
    for ii, it in enumerate(items):
        for f in it.hold: f.last = max(f.last, ii)
    for k, f in enumerate(exitf): f.first = n + 10 + k; f.last = n + 10 + k
    occ = {}
    allfr = [f for it in items for f in it.frags] + list(exitf)
    for f in entry: occ[f.regs] = f.last; f.prev_last = -1
    for f in allfr:
        if any(f is e for e in entry): continue
        if f.regs is None:
            best = min(f.pool, key=lambda b: (occ.get(b, -1), f.pool.index(b)))
            f.regs = best
        f.prev_last = occ.get(f.regs, -1)
        assert f.prev_last < f.first, ('pool too small', f.first, f.prev_last)
        occ[f.regs] = f.last
    ms = [it.mf() for it in items]
    for it, m in zip(items, ms): assert len(m) == it.nm
    mstart = []; c = 0
    for m in ms: mstart.append(c); c += len(m)
    NM = c
    mend = [mstart[i] + len(ms[i]) - 1 for i in range(n)]
    ds = []
    entry = list(entry)
    for f in allfr:
        if any(f is e for e in entry): continue
        for t in f.instrs(): ds.append((f, t))
    lgq = []
    issue_at = {}
    for f in entry:
        for t in f.instrs(): lgq.append(f)
        issue_at[id(f)] = -100
    dsi = 0
    qpos = [0] * len(queues)
    qlast = [-1] * len(queues)
    covered = set(id(f) for f in [])
    def emit(t):
        P(t)
        if t.startswith('ds_'): lgq.append(None)
    def emit_ds(m):
        nonlocal dsi
        f, t = ds[dsi]; P(t); lgq.append(f); issue_at[id(f)] = m; dsi += 1
    def ds_ok(m, ii):
        if dsi >= len(ds): return False
        f, t = ds[dsi]
        if f.prev_last >= 0 and mend[f.prev_last] > m: return False
        if f.first < n + 10 and f.first - ii > look: return False
        if f.first >= n + 10 and (n - ii) + (f.first - n - 10) > look: return False
        return True
    def wait_for(ii, m):
        need = [f for f in items[ii].frags if id(f) not in covered]
        if not need: return
        while any(id(f) not in issue_at or (dsi <= last_ds_idx[id(f)]) for f in need):
            emit_ds(m)
        tgt = list(need)
        for j in range(ii + 1, min(n, ii + 4)):
            ok = True
            for f in items[j].frags:
                if id(f) in covered: continue
                if id(f) not in issue_at or dsi <= last_ds_idx[id(f)] or m - issue_at[id(f)] < age: ok = False
            if not ok: break
            tgt += [f for f in items[j].frags if id(f) not in covered]
        last = max(i for i, x in enumerate(lgq) if x is not None and any(x is f for f in tgt))
        cnt = len(lgq) - 1 - last
        assert cnt <= 15, cnt
        P(f's_waitcnt lgkmcnt({cnt})')
        for x in lgq[:last + 1]:
            if x is not None: covered.add(id(x))
        del lgq[:last + 1]
        if stats is not None: stats['waits'] = stats.get('waits', 0) + 1
    last_ds_idx = {}
    for f in entry: last_ds_idx[id(f)] = -1
    for k, (f, t) in enumerate(ds): last_ds_idx[id(f)] = k
    def needs_wait(ii):
        return ii < n and any(id(f) not in covered for f in items[ii].frags)
    def next_task(m, force_only=False):
        best = None
        for qi, q in enumerate(queues):
            if qpos[qi] < len(q):
                t = q[qpos[qi]]
                if t.sep and qlast[qi] >= m and m < 10**7: continue
                if t.ready <= m and (not force_only or t.due <= m + 1):
                    if best is None or t.due < best[1].due: best = (qi, t)
        return best
    for ii in range(n):
        wait_for(ii, mstart[ii] - 1)
        for mi, mt in enumerate(ms[ii]):
            m = mstart[ii] + mi
            P(mt)
            used = 0
            if mi == len(ms[ii]) - 1 and needs_wait(ii + 1): used += 1
            while True:
                b = next_task(m, True)
                if b is None: break
                emit(b[1].text); qpos[b[0]] += 1; used += b[1].cost; qlast[b[0]] = m
            if used < budget and ds_ok(m, ii):
                emit_ds(m); used += 1
            while used < budget:
                b = next_task(m)
                if b is not None and used + b[1].cost <= budget + (1 if (b[1].cost == 2 and used == 1 and b[1].due - m < 12) else 0):
                    emit(b[1].text); qpos[b[0]] += 1; used += b[1].cost; qlast[b[0]] = m
                elif ds_ok(m, ii) :
                    emit_ds(m); used += 1
                else:
                    break
            if stats is not None: stats['slots'] = stats.get('slots', 0) + used
    left = 0
    while True:
        b = next_task(10**8)
        if b is None: break
        emit(b[1].text); qpos[b[0]] += 1; left += 1
        if dsi < len(ds): emit_ds(NM)
    while dsi < len(ds): emit_ds(NM)
    if stats is not None:
        stats['left'] = stats.get('left', 0) + left
        stats['mfma'] = stats.get('mfma', 0) + NM
    return lgq, mstart, mend
```

```python
import sys, struct
from asmlib import *
from sched import *

NAME = 'concat_heads__gqa_block_cached__gqa_block_cached__near_ridge'
DEBUG = ''
for a in sys.argv[1:]:
    if a.startswith('--debug='): DEBUG = a.split('=')[1]
OPT = {}
for a in sys.argv[1:]:
    if a.startswith('--') and '=' in a:
        k, v = a[2:].split('='); OPT[k] = v

KB = 0; VB = 65536; Q9B = 131072; P9B = 147456; SCR = 151552; LDS_TOTAL = 153600
W1 = 57344
PLANE = 129024
SRD_X, SRD_WQ, SRD_K, SRD_V, SRD_WO, SRD_WS = 4, 8, 12, 16, 20, 24
sW, sW1K, sKV, sCNT, sC, sT0, sT1, sT2, sT3, sX2 = 28, 29, 30, 31, 32, 33, 34, 35, 36, 37
sA, sB = 38, 39
sOFF = 40
sG = 41
vQ = 0; vO9 = 128; vX = [160, 176]; vY = 192; vS9 = 208; vP9f = 212; POOL = [220, 224, 228, 232]
vK = [236, 237]; vV = [238, 239, 240, 241]; vQ9 = [242, 243]; vP9r = 244; vP9w = 245; vDK = 246; vDV = 247
vL = [248, 249, 250, 251]; vL9 = 252; vT = [253, 254, 255]
vACC = [128, 160]; vACC9 = [208, 212]; PPOOL = [192, 196, 200, 204, 220, 224, 228, 232]
vW = [216, 217, 218, 219]; vDW = 253; vQ9w = 254
CSCALE = struct.unpack('<I', struct.pack('<f', 1.4426950408889634 / 16.0))[0]

def srd(P, s, base_lo, base_hi, size):
    P(f's_mov_b32 s{s}, s{base_lo}\ns_and_b32 s{s+1}, s{base_hi}, 0xffff\ns_mov_b32 s{s+2}, {size}\ns_mov_b32 s{s+3}, 0x20000')

def setup(P):
    P(f'''
s_cmp_ge_u32 s2, 256
s_cbranch_scc0 L_go
s_endpgm
L_go:
s_and_b32 s42, s2, 7
s_lshr_b32 s43, s2, 3
s_lshr_b32 s44, s43, 4
s_and_b32 s45, s43, 15
s_mul_i32 s46, s44, 40
s_add_u32 s48, s0, s46
s_addc_u32 s49, s1, 0
s_load_dwordx8 s[52:59], s[48:49], 0
s_load_dwordx2 s[60:61], s[48:49], 32
s_load_dwordx2 s[62:63], s[0:1], 96
v_lshrrev_b32 v1, 6, v0
v_and_b32 v2, 63, v0
s_nop 0
v_readfirstlane_b32 s{sW}, v1
s_waitcnt lgkmcnt(0)
''')
    P(f's_mul_i32 s46, s45, 129024\ns_add_u32 s52, s52, s46\ns_addc_u32 s53, s53, 0')
    srd(P, SRD_X, 52, 53, 129024)
    P(f's_lshl_b32 s46, s45, 3\ns_add_u32 s46, s46, s42\ns_lshr_b32 s47, s46, 13\ns_lshl_b32 s46, s46, 19')
    P(f's_add_u32 s54, s54, s46\ns_addc_u32 s55, s55, s47')
    srd(P, SRD_K, 54, 55, 524288)
    P(f's_add_u32 s56, s56, s46\ns_addc_u32 s57, s57, s47')
    P(f's_sub_u32 s56, s56, 16384\ns_subb_u32 s57, s57, 0')
    srd(P, SRD_V, 56, 57, 524288 + 16384)
    P(f's_lshl_b32 s46, s42, 10\ns_add_u32 s58, s58, s46\ns_addc_u32 s59, s59, 0')
    srd(P, SRD_WQ, 58, 59, 0)
    P(f's_sub_u32 s{SRD_WQ+2}, {448*8192}, s46')
    P(f's_mul_i32 s46, s42, 458752\ns_add_u32 s60, s60, s46\ns_addc_u32 s61, s61, 0')
    srd(P, SRD_WO, 60, 61, 458752)
    stride = PLANE if not DEBUG else 1048576
    P(f's_mul_i32 s46, s2, {stride}\ns_add_u32 s62, s62, s46\ns_addc_u32 s63, s63, 0')
    srd(P, SRD_WS, 62, 63, stride)
    P(f'''
s_lshl_b32 s{sW1K}, s{sW}, 10
s_lshr_b32 s{sA}, s{sW}, 1
s_and_b32 s{sB}, s{sW}, 1
s_mov_b32 s{sC}, {CSCALE}
s_mov_b32 s{sX2}, 14336
''')
    P('v_and_b32 v3, 15, v2\nv_lshrrev_b32 v4, 4, v2')

def lane_consts(P):
    P(f's_lshl_b32 s{sT0}, s{sB}, 1')
    P(f'v_xor_b32 v5, s{sT0}, v4')
    P(f'v_lshrrev_b32 v6, 1, v3')
    P(f'v_xor_b32 v6, v5, v6')
    P(f's_lshl_b32 s{sT1}, s{sA}, 2')
    P(f'v_xor_b32 v7, s{sT1}, v6')
    P(f'v_lshlrev_b32 v7, 4, v7\nv_lshlrev_b32 v8, 7, v3')
    P(f'v_add_u32 v{vK[0]}, v7, v8\nv_xor_b32 v{vK[1]}, 64, v{vK[0]}')
    P(f'v_lshlrev_b32 v7, 4, v5\nv_add_u32 v7, v7, v3\nv_lshlrev_b32 v7, 4, v7')
    P(f's_mul_i32 s{sT1}, s{sA}, {8192+1024}\ns_add_u32 s{sT1}, s{sT1}, {Q9B}')
    P(f'v_add_u32 v{vQ9[0]}, s{sT1}, v7\nv_xor_b32 v{vQ9[1]}, 0x400, v{vQ9[0]}')
    P('v_lshrrev_b32 v9, 2, v3')
    P('v_lshrrev_b32 v10, 1, v3\nv_and_b32 v10, 1, v10')
    P('v_and_b32 v11, 1, v3\nv_lshlrev_b32 v11, 3, v11')
    P('v_lshlrev_b32 v12, 2, v4\nv_add_u32 v12, v12, v9')
    P('v_and_b32 v13, 6, v12')
    P(f's_lshl_b32 s{sT1}, s{sW}, 1')
    P(f'v_xor_b32 v14, s{sT1}, v10')
    P('v_xor_b32 v14, v14, v13\nv_lshlrev_b32 v14, 4, v14')
    P('v_lshlrev_b32 v15, 7, v12\nv_add_u32 v14, v14, v15\nv_add_u32 v14, v14, v11')
    P(f'v_add_u32 v{vV[0]}, {VB}, v14')
    for u in (1, 2, 3): P(f'v_xor_b32 v{vV[u]}, {u*32}, v{vV[0]}')
    P('v_lshlrev_b32 v12, 3, v4\nv_add_u32 v12, v12, v9')
    P('v_and_b32 v13, 2, v9\nv_and_b32 v15, 1, v4\nv_lshlrev_b32 v15, 2, v15\nv_or_b32 v13, v13, v15')
    P(f'v_xor_b32 v14, s{sT1}, v10\nv_xor_b32 v14, v14, v13\nv_lshlrev_b32 v14, 4, v14')
    P(f'v_lshlrev_b32 v15, 7, v12\nv_add_u32 v14, v14, v15\nv_add_u32 v{vW[0]}, v14, v11')
    for u in (1, 2, 3): P(f'v_xor_b32 v{vW[u]}, {u*32}, v{vW[0]}')
    P(f'v_lshlrev_b32 v7, 4, v2\nv_add_u32 v{vP9r}, {P9B}, v7')
    P(f's_lshl_b32 s{sT0}, s{sA}, 10\ns_lshl_b32 s{sT1}, s{sB}, 3\ns_add_u32 s{sT0}, s{sT0}, s{sT1}')
    P(f'v_add_u32 v{vP9w}, s{sT0}, v{vP9r}')
    P(f's_lshl_b32 s{sT0}, s{sB}, 1\nv_lshrrev_b32 v7, 1, v4\nv_add_u32 v7, s{sT0}, v7\nv_lshlrev_b32 v7, 4, v7\nv_add_u32 v7, v7, v3\nv_lshlrev_b32 v7, 4, v7')
    P(f'v_and_b32 v8, 1, v4\nv_lshlrev_b32 v8, 3, v8\nv_add_u32 v7, v7, v8')
    P(f's_lshl_b32 s{sT0}, s{sA}, 10\ns_add_u32 s{sT0}, s{sT0}, {Q9B}\nv_add_u32 v{vQ9w}, s{sT0}, v7')
    P('v_lshrrev_b32 v7, 3, v2\nv_and_b32 v8, 7, v2')
    P(f's_lshl_b32 s{sT0}, s{sB}, 2\nv_add_u32 v9, s{sT0}, v4\nv_xor_b32 v9, v8, v9\nv_lshlrev_b32 v9, 4, v9\nv_lshlrev_b32 v12, 9, v7')
    P(f's_lshl_b32 s{sT1}, s{sW}, 12\nv_add_u32 v12, s{sT1}, v12\nv_add_u32 v{vDK}, v9, v12')
    P(f'v_and_b32 v9, 6, v7\nv_xor_b32 v9, v8, v9\nv_lshlrev_b32 v9, 4, v9\nv_add_u32 v{vDV}, v9, v12')
    P(f'v_and_b32 v9, 2, v7\nv_or_b32 v9, s{sT0}, v9\nv_xor_b32 v9, v8, v9\nv_lshlrev_b32 v9, 4, v9\nv_lshlrev_b32 v12, 13, v7')
    P(f's_lshl_b32 s{sT1}, s{sW}, 16\nv_add_u32 v12, s{sT1}, v12\nv_add_u32 v{vDW}, v9, v12')

def dmaW(g):
    hh, cb = g >> 2, g & 3
    buf = (g & 1) * W1
    L = []
    for j in range(14):
        L.append(f's_add_u32 m0, s{sW1K}, {buf + j*4096}')
        L.append(f's_mov_b32 s{sOFF}, {j*262144 + hh*512 + cb*128}')
        L.append(f'buffer_load_dwordx4 v{vDW}, s[{SRD_WQ}:{SRD_WQ+3}], s{sOFF} offen lds')
    return L

def dmaKV(which, tile_soff_reg, slot):
    base = (KB if which == 'K' else VB) + slot * 16384
    srdv = SRD_K if which == 'K' else SRD_V
    vo = vDK if which == 'K' else vDV
    L = []
    for cb in range(4):
        L.append(f's_add_u32 m0, s{sW1K}, {base + cb*4096 - cb*128}')
        L.append(f'buffer_load_dwordx4 v{vo}, s[{srdv}:{srdv+3}], s{tile_soff_reg} offen offset:{cb*128} nt lds')
    return L

def xa(qt, ks): return (ks * 2 + qt) * 4
def x9a(ks): return 112 + ks * 4
def Qr(qt, s): return vQ + (qt * 8 + s) * 4
MF = 'v_mfma_f32_16x16x32_bf16'

def conv_tasks(g):
    hh, cb = g >> 2, g & 3
    A = vACC[g & 1]; A9 = vACC9[g & 1]
    L = []
    for qt in range(2):
        for vp in range(2):
            q = Qr(2 * hh + qt, 2 * cb + vp)
            for e in range(2):
                t = A + ((2 * vp + e) * 2 + qt) * 4
                for r in range(4): L.append(f'v_mul_f32 v{t+r}, s{sC}, v{t+r}')
            for e in range(2):
                t = A + ((2 * vp + e) * 2 + qt) * 4
                L.append(f'v_cvt_pk_bf16_f32 v{q+2*e}, v{t}, v{t+1}')
                L.append(f'v_cvt_pk_bf16_f32 v{q+2*e+1}, v{t+2}, v{t+3}')
    for r in range(4): L.append(f'v_mul_f32 v{A9+r}, s{sC}, v{A9+r}')
    L.append(f'v_cvt_pk_bf16_f32 v{A9}, v{A9}, v{A9+1}')
    L.append(f'v_cvt_pk_bf16_f32 v{A9+1}, v{A9+2}, v{A9+3}')
    for qt in range(2):
        for vp in range(2):
            q = Qr(2 * hh + qt, 2 * cb + vp)
            L.append(f'v_permlane32_swap_b32 v{q}, v{q+2}')
            L.append(f'v_permlane32_swap_b32 v{q+1}, v{q+3}')
    L.append(f'ds_write_b64 v{vQ9w}, v[{A9}:{A9+1}] offset:{hh*8192+cb*2048}')
    for qt in range(2):
        for vp in range(2):
            q = Qr(2 * hh + qt, 2 * cb + vp)
            L.append(f'v_permlane16_swap_b32 v{q}, v{q+2}')
            L.append(f'v_permlane16_swap_b32 v{q+1}, v{q+3}')
    return L

def qproj(P, stats):
    P(f's_lshl_b32 s{sT0}, s{sW}, 5\nv_add_u32 v5, s{sT0}, v3\nv_mul_u32_u24 v5, 896, v5\nv_lshlrev_b32 v6, 4, v4\nv_add_u32 v5, v5, v6')
    P(f'v_add_u32 v7, 128, v3\nv_mul_u32_u24 v7, 896, v7\nv_add_u32 v7, v7, v6')
    for t in dmaW(0): P(t)
    for ks in range(14):
        P(f'buffer_load_dwordx4 a[{xa(0,ks)}:{xa(0,ks)+3}], v5, s[{SRD_X}:{SRD_X+3}], 0 offen offset:{ks*64}')
        P(f'buffer_load_dwordx4 a[{xa(1,ks)}:{xa(1,ks)+3}], v5, s[{SRD_X}:{SRD_X+3}], s{sX2} offen offset:{ks*64}')
        P(f'buffer_load_dwordx4 a[{x9a(ks)}:{x9a(ks)+3}], v7, s[{SRD_X}:{SRD_X+3}], 0 offen offset:{ks*64}')
    P('s_waitcnt vmcnt(40)')
    P(f's_mov_b32 s{sKV}, 16384')
    for t in dmaKV('V', sKV, 3): P(t)
    for t in dmaW(1): P(t)
    P('s_waitcnt vmcnt(14)\ns_barrier')
    wstate = 0
    for g in range(8):
        buf = g & 1
        A = vACC[buf]; A9 = vACC9[buf]
        items = []
        for ks in range(14):
            for up in range(4):
                f = Frag('tr', vW[up], ks * 4096, pool=PPOOL, imm2=ks * 4096 + 512)
                def mf(f=f, ks=ks, up=up):
                    r = f.regs; o = []
                    for qt in range(2):
                        t = A + (up * 2 + qt) * 4
                        c = '0' if ks == 0 else f'v[{t}:{t+3}]'
                        o.append(f'{MF} v[{t}:{t+3}], v[{r}:{r+3}], a[{xa(qt,ks)}:{xa(qt,ks)+3}], {c}')
                    if up == 0:
                        c = '0' if ks == 0 else f'v[{A9}:{A9+3}]'
                        o.append(f'{MF} v[{A9}:{A9+3}], v[{r}:{r+3}], a[{x9a(ks)}:{x9a(ks)+3}], {c}')
                    return o
                items.append(Item([f], mf, 3 if up == 0 else 2))
        st, NM = mstarts(items)
        queues = []
        dq = []
        if g >= 1 and g + 1 < 8:
            dq = [Task(t, ready=0, due=NM - 30) for t in dmaW(g + 1)]
        if g == 7:
            L = []
            for j in range(3):
                L.append(f's_mov_b32 s{sKV}, {j*16384}')
                L += dmaKV('K', sKV, j)
            dq = [Task(t, ready=0, due=NM - 30, sep=t.startswith('buffer')) for t in L]
        queues.append(dq)
        if g >= 1:
            queues.append([Task(t, ready=4, due=NM - 4) for t in conv_tasks(g - 1)])
        schedule(P, items, queues, stats=stats, look=5)
        if g < 6: P('s_waitcnt vmcnt(0)')
        elif g == 6: P('s_waitcnt vmcnt(0)')
        else: P('s_waitcnt vmcnt(4)')
        P('s_waitcnt lgkmcnt(0)\ns_barrier')
        if g < 7:
            d = W1 if buf == 0 else -W1
            for u in range(4):
                if d > 0: P(f'v_add_u32 v{vW[u]}, {d}, v{vW[u]}')
                else: P(f'v_subrev_u32 v{vW[u]}, {-d}, v{vW[u]}')
    P(f's_mov_b32 s{sKV}, {2*16384}')
    for t in dmaKV('V', sKV, 0): P(t)
    P(f's_mov_b32 s{sKV}, {3*16384}')
    for t in dmaKV('K', sKV, 3): P(t)
    for t in dmaKV('V', sKV, 1): P(t)
    P('s_nop 7')
    for t in conv_tasks(7): P(t)
    P('s_waitcnt lgkmcnt(0)\ns_barrier')


def Sr(slot, qt): return slot + qt * 4
def Oa(cb, up, qt): return ((cb * 4 + up) * 4 + qt) * 4
def O9r(cb, q9): return vO9 + (cb * 2 + q9) * 4

def sm_tile(src, dst2, l):
    L = [f'v_exp_f32 v{src+r}, v{src+r}' for r in range(4)]
    L += [f'v_add_f32 v{l}, v{l}, v{src+r}' for r in range(4)]
    L += [f'v_cvt_pk_bf16_f32 v{dst2}, v{src}, v{src+1}', f'v_cvt_pk_bf16_f32 v{dst2+1}, v{src+2}, v{src+3}']
    return L

def interleave_sm(tiles):
    out = []
    n = len(tiles)
    for t in range(n + 1):
        ex = tiles[t][:4] if t < n else []
        rest = tiles[t - 1][4:] if t > 0 else []
        k = 0
        for e in ex:
            out.append(e)
            if k < len(rest): out.append(rest[k]); k += 1
        out += rest[k:]
    return out

KENTRY = [POOL[0], POOL[1], POOL[2]]
def k_frag(kslot, kt, sp, regs=None, pool=None):
    return Frag('b128', vK[sp & 1], KB + kslot * 16384 + (sp >> 1) * 4096 + kt * 2048, pool=pool, regs=regs)

def phaseA_items(i, kt9, poolA):
    kslot = (i + 1) & 3
    S0 = vX[(i + 1) & 1]
    items = []
    cnt = 0
    for kt in range(2):
        S = S0 if kt == 0 else vY
        for sp in range(8):
            regs = KENTRY[cnt] if cnt < len(KENTRY) else None
            fk = k_frag(kslot, kt, sp, regs=regs, pool=poolA); cnt += 1
            fr = [fk]
            f9 = None
            if kt == kt9:
                f9 = Frag('b128', vQ9[sp & 1], (sp >> 1) * 2048, pool=poolA); fr.append(f9)
            def mf(fk=fk, f9=f9, S=S, sp=sp):
                r = fk.regs; o = []
                for qt in range(4):
                    t = Sr(S, qt); c = '0' if sp == 0 else f'v[{t}:{t+3}]'
                    o.append(f'{MF} v[{t}:{t+3}], v[{r}:{r+3}], v[{Qr(qt,sp)}:{Qr(qt,sp)+3}], {c}')
                if f9 is not None:
                    c = '0' if sp == 0 else f'v[{vS9}:{vS9+3}]'
                    o.insert(2, f'{MF} v[{vS9}:{vS9+3}], v[{r}:{r+3}], v[{f9.regs}:{f9.regs+3}], {c}')
                return o
            items.append(Item(fr, mf, 5 if f9 is not None else 4, tag=('qk', kt, sp)))
    return items

def phaseB_items(i, zero=False):
    vslot = (i + 3) & 3
    Pc = vX[i & 1]
    buf = i & 1
    items = []
    p9 = [Frag('b128', vP9r, buf * 2048 + q9 * 1024, regs=vP9f + 4 * q9) for q9 in range(2)]
    for up in (1, 0, 2, 3):
        for cb in range(4):
            imm = vslot * 16384 + cb * 4096
            fv = Frag('tr', vV[up], imm, pool=POOL, imm2=imm + 2048)
            fr = [fv]
            if up == 0 and cb == 0: fr = p9 + [fv]
            def mf(fv=fv, up=up, cb=cb):
                r = fv.regs; o = []
                for qt in range(4):
                    a = Oa(cb, up, qt); c = '0' if zero else f'a[{a}:{a+3}]'
                    o.append(f'{MF} a[{a}:{a+3}], v[{r}:{r+3}], v[{Sr(Pc,qt)}:{Sr(Pc,qt)+3}], {c}')
                if up == 0:
                    for q9 in range(2):
                        t = O9r(cb, q9); c = '0' if zero else f'v[{t}:{t+3}]'
                        o.insert(2 + 2 * q9 - (0), f'{MF} v[{t}:{t+3}], v[{r}:{r+3}], v[{vP9f+4*q9}:{vP9f+4*q9+3}], {c}')
                return o
            items.append(Item(fr, mf, 6 if up == 0 else 4, tag=('pv', up, cb), hold=(p9 if (up == 0 and cb > 0) else [])))
    return items

def softmax_queues(i, kt9, itemsA, st, NM, a_end, haveB=True):
    S0 = vX[(i + 1) & 1]
    kt0_end = st[8] - 1 if len(st) > 8 else None
    t0 = [sm_tile(Sr(S0, qt), Sr(S0, qt), vL[qt]) for qt in range(4)]
    t1 = [sm_tile(Sr(vY, qt), Sr(S0, qt) + 2, vL[qt]) for qt in range(4)]
    q = []
    r0 = st[8] + 3
    q += [Task(t, ready=r0) for t in interleave_sm(t0)]
    r1 = a_end + 3
    t9 = sm_tile(vS9, vS9, vL9) + [f'ds_write_b64 v{vP9w}, v[{vS9}:{vS9+1}] offset:{((i+1)&1)*2048}']
    if kt9 == 0:
        q9 = [Task(t, ready=r0) for t in t9]
        q = q + q9
        q += [Task(t, ready=r1) for t in interleave_sm(t1)]
    else:
        q += [Task(t, ready=r1) for t in interleave_sm(t1[:1])]
        q += [Task(t, ready=r1) for t in t9]
        q += [Task(t, ready=r1) for t in interleave_sm(t1[1:])]
    return q

def gen_iter(P, i, kt9, stats, dma=True, zero=False):
    poolA = POOL + [vP9f, vP9f + 4]
    A = phaseA_items(i, kt9, poolA)
    B = phaseB_items(i, zero)
    items = A + B
    st, NM = mstarts(items)
    a_end = st[len(A)]
    queues = []
    dq = []
    if dma:
        L = dmaKV('K', sKV, i & 3) + dmaKV('V', sKV, (i + 3 + 3) & 3)
        dq = [Task(t, ready=0, due=a_end - 8, sep=t.startswith('buffer')) for t in L]
        dq.append(Task(f's_add_u32 s{sKV}, s{sKV}, 16384', ready=0, due=a_end - 2))
    sq = softmax_queues(i, kt9, A, st, NM, a_end)
    for t in sq: t.due = NM - 2
    queues = [sq, dq]
    entry = [A[k].frags[0] for k in range(3)]
    nk = (i + 2) & 3
    exitf = [k_frag(nk, 0, sp, regs=KENTRY[sp]) for sp in range(3)]
    lgq, _, _ = schedule(P, items, queues, entry=entry, exitf=exitf, stats=stats, look=4)
    n_out = 3
    assert all(x is not None for x in lgq[-3:]), lgq
    P(f's_waitcnt vmcnt(12) lgkmcnt(3)')
    P('s_barrier')

def attn_prologue(P, kt9, stats):
    i = -1
    poolA = POOL + [vP9f, vP9f + 4]
    A = phaseA_items(i, kt9, poolA)
    for k in range(3): A[k].frags[0].regs = KENTRY[k]
    st, NM = mstarts(A)
    sq = softmax_queues(i, kt9, A, st + [NM], NM, NM + 100)
    zq = [Task(f'v_accvgpr_write_b32 a{r}, 0', ready=0) for r in range(256)] + [Task(f'v_mov_b32 v{vO9+r}, 0', ready=0) for r in range(32)]
    exitf = [k_frag((i + 2) & 3, 0, sp, regs=KENTRY[sp]) for sp in range(3)]
    lgq, _, _ = schedule(P, A, [sq, zq], entry=[], exitf=[], stats=stats, look=4)
    for f in exitf:
        for t in f.instrs(): P(t)
    P('s_waitcnt vmcnt(12) lgkmcnt(3)')
    P('s_barrier')

def attn_tail(P, kt9, stats):
    i = 3
    B = phaseB_items(i)
    P('s_waitcnt lgkmcnt(0)')
    schedule(P, B, [], stats=stats, look=4)

def attention(P, stats):
    P(f's_mov_b32 s{sKV}, {4*16384}')
    for qt in range(4): P(f'v_mov_b32 v{vL[qt]}, 0')
    P(f'v_mov_b32 v{vL9}, 0')
    P(f's_cmp_eq_u32 s{sB}, 1\ns_cbranch_scc1 L_attn1')
    for kt9 in range(2):
        if kt9 == 1: P.label('L_attn1')
        attn_prologue(P, kt9, stats)
        P(f's_mov_b32 s{sCNT}, 8')
        P('.p2align 3')
        P.label(f'L_loop{kt9}')
        for i in range(4):
            if i == 3:
                P(f's_sub_u32 s{sCNT}, s{sCNT}, 1\ns_cmp_eq_u32 s{sCNT}, 0\ns_cbranch_scc1 L_tail{kt9}')
            gen_iter(P, i, kt9, stats)
        P(f's_branch L_loop{kt9}')
        P.label(f'L_tail{kt9}')
        attn_tail(P, kt9, stats)
        if kt9 == 0: P('s_branch L_attn_done')
    P.label('L_attn_done')

vA = [[236, 237, 238, 239], [240, 241, 242, 243], [244, 245, 246, 247], [216, 217, 218, 219]]
vDO = 253; vST = 254; vST9 = 255
def OP(qt, s): return vQ + (qt * 8 + s) * 4

def lane_recompute(P, lane, n, g):
    P(f'v_mbcnt_lo_u32_b32 v{lane}, -1, 0\nv_mbcnt_hi_u32_b32 v{lane}, -1, v{lane}')
    P(f'v_and_b32 v{n}, 15, v{lane}\nv_lshrrev_b32 v{g}, 4, v{lane}')

def rowsum_reduce(P, r, t):
    P(f'v_mov_b32 v{t}, v{r}\ns_nop 1\nv_permlane32_swap_b32 v{t}, v{r}\ns_nop 1\nv_add_f32 v{r}, v{r}, v{t}')
    P(f'v_mov_b32 v{t}, v{r}\ns_nop 1\nv_permlane16_swap_b32 v{t}, v{r}\ns_nop 1\nv_add_f32 v{r}, v{r}, v{t}')

def dmaO(cg, buf):
    L = []
    for j in range(16):
        L.append(f's_add_u32 m0, s{sW1K}, {buf*65536 + j*4096}')
        L.append(f's_add_u32 s{sOFF}, s{sG}, {j*32*896}' if cg is None else f's_mov_b32 s{sOFF}, {j*32*896 + cg*128}')
        L.append(f'buffer_load_dwordx4 v{vDO}, s[{SRD_WO}:{SRD_WO+3}], s{sOFF} offen lds')
    return L

def epilogue(P):
    T = [192, 193, 194, 195, 196, 197, 198, 199]
    lane, n, g = 200, 201, 202
    lane_recompute(P, lane, n, g)
    P(f'v_lshrrev_b32 v203, 3, v{lane}\nv_and_b32 v204, 7, v{lane}\nv_and_b32 v205, 6, v203\nv_xor_b32 v204, v204, v205\nv_lshlrev_b32 v204, 4, v204')
    P(f'v_mul_u32_u24 v203, 896, v203\nv_add_u32 v203, v203, v204\ns_mul_i32 s{sT0}, s{sW}, {8*896}\nv_add_u32 v{vDO}, s{sT0}, v203')
    P('s_waitcnt vmcnt(0)\ns_barrier')
    for t in dmaO(0, 0): P(t)
    for t in dmaO(1, 1): P(t)
    P(f'v_lshlrev_b32 v203, 2, v{lane}\ns_lshl_b32 s{sT0}, s{sW}, 8\ns_add_u32 s{sT0}, s{sT0}, {SCR}\nv_add_u32 v203, s{sT0}, v203')
    P(f'ds_write_b32 v203, v{vL9}')
    for qt in range(4): rowsum_reduce(P, vL[qt], T[qt])
    P('s_waitcnt lgkmcnt(0)\ns_barrier')
    P(f'v_lshlrev_b32 v203, 2, v{n}\nv_add_u32 v203, {SCR}, v203')
    L9 = [206, 207]
    for q9 in range(2):
        for k in range(8):
            wv = 2 * q9 + (k >> 2); gg = k & 3
            P(f'ds_read_b32 v{208+k}, v203 offset:{wv*256+gg*64}')
        P('s_waitcnt lgkmcnt(0)')
        P(f'v_add_f32 v{L9[q9]}, v208, v209')
        for k in range(2, 8): P(f'v_add_f32 v{L9[q9]}, v{L9[q9]}, v{208+k}')
    return T, lane, n, g, L9

def normalise(P, T, lane, n, g, L9):
    for qt in range(4): P(f'v_rcp_f32 v{vL[qt]}, v{vL[qt]}')
    for q9 in range(2): P(f'v_rcp_f32 v{L9[q9]}, v{L9[q9]}')
    P('s_nop 0')
    P(f'v_lshlrev_b32 v203, 3, v{lane}\ns_lshl_b32 s{sT0}, s{sW}, 9\ns_add_u32 s{sT0}, s{sT0}, {Q9B}\nv_add_u32 v203, s{sT0}, v203')
    for cb in range(4):
        for q9 in range(2):
            t = O9r(cb, q9)
            for r in range(4): P(f'v_mul_f32 v{t+r}, v{t+r}, v{L9[q9]}')
            P(f'v_cvt_pk_bf16_f32 v{t}, v{t}, v{t+1}\nv_cvt_pk_bf16_f32 v{t+1}, v{t+2}, v{t+3}')
            P(f'ds_write_b64 v203, v[{t}:{t+1}] offset:{(q9*16+4*cb)*512}')
    for qt in range(4):
        for cb in range(4):
            for up in range(4):
                a = Oa(cb, up, qt); tt = T[(up & 1) * 4:(up & 1) * 4 + 4]
                d = OP(qt, 2 * cb + (up >> 1)) + (up & 1) * 2
                for r in range(4): P(f'v_accvgpr_read_b32 v{tt[r]}, a{a+r}')
                for r in range(4): P(f'v_mul_f32 v{tt[r]}, v{tt[r]}, v{vL[qt]}')
                P(f'v_cvt_pk_bf16_f32 v{d}, v{tt[0]}, v{tt[1]}\nv_cvt_pk_bf16_f32 v{d+1}, v{tt[2]}, v{tt[3]}')
    P('s_waitcnt lgkmcnt(0)\ns_barrier')
    P(f'v_lshlrev_b32 v203, 3, v{lane}\nv_add_u32 v203, {Q9B}, v203')
    for k in range(4):
        P(f's_xor_b32 s{sT0}, s{sW}, {k}\ns_lshl_b32 s{sT0}, s{sT0}, 9\nv_add_u32 v{204+0}, s{sT0}, v203' if False else
          f's_xor_b32 s{sT0}, s{sW}, {k}\ns_lshl_b32 s{sT0}, s{sT0}, 9\nv_add_u32 v{208+k}, s{sT0}, v203')
    for hp in range(2):
        for cb in range(4):
            for vp in range(2):
                a = ((hp * 4 + cb) * 2 + vp) * 4
                for e in range(2):
                    P(f'ds_read_b64 a[{a+2*e}:{a+2*e+1}], v{208+2*vp+e} offset:{(hp*16+4*cb)*512}')
            if cb & 1: P('s_waitcnt lgkmcnt(0)')
    P(f'v_lshrrev_b32 v203, 2, v{n}\nv_lshlrev_b32 v204, 2, v{g}\nv_add_u32 v203, v203, v204')
    P(f'v_and_b32 v204, 6, v203\nv_lshrrev_b32 v205, 1, v{n}\nv_and_b32 v205, 1, v205')
    P(f's_lshl_b32 s{sT0}, s{sW}, 1\nv_xor_b32 v205, s{sT0}, v205\nv_xor_b32 v205, v205, v204\nv_lshlrev_b32 v205, 4, v205')
    P(f'v_lshlrev_b32 v203, 7, v203\nv_add_u32 v205, v205, v203\nv_and_b32 v204, 1, v{n}\nv_lshlrev_b32 v204, 3, v204\nv_add_u32 v205, v205, v204')
    for k in range(4):
        P(f's_xor_b32 s{sT0}, s{sW}, {k}\ns_lshl_b32 s{sT0}, s{sT0}, 11\nv_add_u32 v206, s{sT0}, v205')
        for u in range(4): P(f'v_xor_b32 v{vA[k][u]}, {u*32}, v206')
    P(f'v_lshlrev_b32 v203, 4, v{lane}\ns_lshl_b32 s{sT0}, s{sW}, 12\nv_add_u32 v{vST}, s{sT0}, v203')
    P(f'v_lshlrev_b32 v203, 3, v{lane}\ns_lshl_b32 s{sT0}, s{sW}, 9\ns_add_u32 s{sT0}, s{sT0}, 114688\nv_add_u32 v{vST9}, s{sT0}, v203')

STF = OPT.get('stf', '')
def store_tasks(cg):
    A = vACC[cg & 1]; A9 = vACC9[cg & 1]
    L = []
    for qt in range(2):
        for vp in range(2):
            t = A + ((2 * vp) * 2 + qt) * 4; u = A + ((2 * vp + 1) * 2 + qt) * 4
            L += [f'v_cvt_pk_bf16_f32 v{t}, v{t}, v{t+1}', f'v_cvt_pk_bf16_f32 v{t+1}, v{t+2}, v{t+3}',
                  f'v_cvt_pk_bf16_f32 v{t+2}, v{u}, v{u+1}', f'v_cvt_pk_bf16_f32 v{t+3}, v{u+2}, v{u+3}']
    L += [f'v_cvt_pk_bf16_f32 v{A9}, v{A9}, v{A9+1}', f'v_cvt_pk_bf16_f32 v{A9+1}, v{A9+2}, v{A9+3}']
    L.append(f's_mov_b32 s{sT1}, {cg*16384}')
    L.append(f's_mov_b32 s{sT2}, {cg*2048}')
    for qt in range(2):
        for vp in range(2):
            t = A + ((2 * vp) * 2 + qt) * 4
            L.append(f'buffer_store_dwordx4 v[{t}:{t+3}], v{vST}, s[{SRD_WS}:{SRD_WS+3}], s{sT1} offen offset:{(qt*2+vp)*1024} {STF}'.strip())
    L.append(f'buffer_store_dwordx2 v[{A9}:{A9+1}], v{vST9}, s[{SRD_WS}:{SRD_WS+3}], s{sT2} offen {STF}'.strip())
    return L

def outproj(P, stats):
    P('s_waitcnt vmcnt(16) lgkmcnt(0)\ns_barrier')
    for cg in range(7):
        buf = cg & 1
        A = vACC[buf]; A9 = vACC9[buf]
        items = []
        first = True
        for hp in range(2):
            for cb in range(4):
                for vp in range(2):
                    for up in range(4):
                        imm = hp * 32768 + cb * 8192
                        f = Frag('tr', vA[2 * vp][up], imm, pool=PPOOL, imm2=imm, addr2=vA[2 * vp + 1][up])
                        z = (hp == 0 and cb == 0 and vp == 0)
                        def mf(f=f, hp=hp, cb=cb, vp=vp, up=up, z=z):
                            r = f.regs; o = []
                            for qt in range(2):
                                t = A + (up * 2 + qt) * 4; c = '0' if z else f'v[{t}:{t+3}]'
                                b = OP(2 * hp + qt, 2 * cb + vp)
                                o.append(f'{MF} v[{t}:{t+3}], v[{r}:{r+3}], v[{b}:{b+3}], {c}')
                            if up == 0:
                                c = '0' if z else f'v[{A9}:{A9+3}]'
                                b = ((hp * 4 + cb) * 2 + vp) * 4
                                o.append(f'{MF} v[{A9}:{A9+3}], v[{r}:{r+3}], a[{b}:{b+3}], {c}')
                            return o
                        items.append(Item([f], mf, 3 if up == 0 else 2))
        st, NM = mstarts(items)
        queues = []
        nst = 0
        if cg >= 1 and cg + 1 < 7:
            queues.append([Task(t, ready=0, due=NM - 40) for t in dmaO(cg + 1, (cg + 1) & 1)])
        if cg >= 1:
            queues.append([Task(t, ready=4, due=NM - 20) for t in store_tasks(cg - 1)])
        schedule(P, items, queues, stats=stats, look=5)
        if cg < 6:
            P('s_waitcnt vmcnt(0) lgkmcnt(0)\ns_barrier')
            for k in range(4):
                for u in range(4): P(f'v_xor_b32 v{vA[k][u]}, 0x10000, v{vA[k][u]}')
    P('s_nop 7')
    for t in store_tasks(6): P(t)
    P('s_waitcnt vmcnt(0)')

def reduce_kernel(P):
    P.label('reduce_kernel')
    P(f"""
s_cmp_ge_u32 s2, 1008
s_cbranch_scc0 R_go
s_endpgm
R_go:
s_load_dwordx2 s[4:5], s[0:1], 96
s_load_dwordx2 s[6:7], s[0:1], 80
s_lshl_b32 s3, s2, 8
v_add_u32 v1, s3, v0
s_mov_b32 s8, {(2**32 + 8064 - 1)//8064}
v_mul_hi_u32 v2, v1, s8
v_mul_u32_u24 v3, 8064, v2
v_sub_u32 v3, v1, v3
s_waitcnt lgkmcnt(0)
s_mov_b32 s12, s4
s_and_b32 s13, s5, 0xffff
s_mov_b32 s14, {256*PLANE}
s_mov_b32 s15, 0x20000
s_mov_b32 s16, s6
s_and_b32 s17, s7, 0xffff
s_mov_b32 s18, {16*144*896*2}
s_mov_b32 s19, 0x20000
s_mov_b32 s9, {8*PLANE}
v_mul_lo_u32 v4, v2, s9
v_lshlrev_b32 v5, 4, v3
v_add_u32 v4, v4, v5
""")
    for k in range(8):
        P(f's_mov_b32 s20, {k*PLANE}')
        P(f'buffer_load_dwordx4 v[{16+4*k}:{19+4*k}], v4, s[12:15], s20 offen')
    P(f"""
v_and_b32 v6, 63, v3
v_lshrrev_b32 v7, 6, v3
v_and_b32 v8, 1, v7
v_lshrrev_b32 v9, 1, v7
v_and_b32 v9, 1, v9
v_lshrrev_b32 v10, 2, v7
v_and_b32 v10, 3, v10
v_lshrrev_b32 v11, 4, v7
v_and_b32 v12, 15, v6
v_lshrrev_b32 v13, 4, v6
v_lshlrev_b32 v14, 5, v10
v_lshlrev_b32 v15, 4, v9
v_add_u32 v14, v14, v15
v_add_u32 v14, v14, v12
v_lshlrev_b32 v15, 1, v8
v_xor_b32 v15, v15, v10
v_lshlrev_b32 v48, 4, v15
v_xor_b32 v15, 1, v15
v_lshlrev_b32 v49, 4, v15
v_lshlrev_b32 v15, 6, v11
v_lshlrev_b32 v50, 2, v13
v_add_u32 v15, v15, v50
v_add_u32 v48, v48, v15
v_add_u32 v49, v49, v15
v_mov_b32 v51, v14
v_subrev_u32 v52, 7168, v3
v_lshrrev_b32 v53, 5, v52
v_and_b32 v54, 31, v52
v_lshlrev_b32 v54, 1, v54
v_and_b32 v55, 15, v54
v_lshrrev_b32 v56, 4, v54
v_and_b32 v57, 3, v53
v_lshrrev_b32 v58, 2, v53
v_lshlrev_b32 v58, 6, v58
v_lshlrev_b32 v57, 4, v57
v_add_u32 v58, v58, v57
v_lshlrev_b32 v56, 2, v56
v_add_u32 v58, v58, v56
v_add_u32 v55, 128, v55
v_add_u32 v59, 1, v55
v_cmp_le_u32 vcc, 7168, v3
s_nop 1
v_cndmask_b32 v14, v14, v55, vcc
v_cndmask_b32 v51, v51, v59, vcc
v_cndmask_b32 v48, v48, v58, vcc
v_cndmask_b32 v49, v49, v58, vcc
v_lshrrev_b32 v60, 4, v2
v_and_b32 v61, 15, v2
v_mul_u32_u24 v61, 144, v61
v_mul_u32_u24 v60, 448, v60
v_add_u32 v14, v14, v61
v_add_u32 v51, v51, v61
v_mul_u32_u24 v14, 896, v14
v_mul_u32_u24 v51, 896, v51
v_add_u32 v14, v14, v60
v_add_u32 v51, v51, v60
v_add_u32 v14, v14, v48
v_add_u32 v51, v51, v49
v_lshlrev_b32 v14, 1, v14
v_lshlrev_b32 v51, 1, v51
""")
    for k in range(8):
        P(f's_waitcnt vmcnt({7-k})')
        for d in range(4):
            src = 16 + 4 * k + d
            if k == 0:
                P(f'v_lshlrev_b32 v{64+2*d}, 16, v{src}\nv_and_b32 v{65+2*d}, 0xffff0000, v{src}')
            else:
                P(f'v_lshlrev_b32 v62, 16, v{src}\nv_and_b32 v63, 0xffff0000, v{src}\nv_add_f32 v{64+2*d}, v{64+2*d}, v62\nv_add_f32 v{65+2*d}, v{65+2*d}, v63')
    P("""
v_cvt_pk_bf16_f32 v72, v64, v65
v_cvt_pk_bf16_f32 v73, v66, v67
v_cvt_pk_bf16_f32 v74, v68, v69
v_cvt_pk_bf16_f32 v75, v70, v71
buffer_store_dwordx2 v[72:73], v14, s[16:19], 0 offen
buffer_store_dwordx2 v[74:75], v51, s[16:19], 0 offen
s_waitcnt vmcnt(0)
s_endpgm
""")

HEADER = open('header.txt').read()

def dump_regs(P, regs, acc=False, base=0):
    P('v_mbcnt_lo_u32_b32 v253, -1, 0\nv_mbcnt_hi_u32_b32 v253, -1, v253')
    P(f's_lshl_b32 s{sT0}, s{sW}, 6\nv_add_u32 v253, s{sT0}, v253\nv_lshlrev_b32 v253, 2, v253')
    for k, r in enumerate(regs):
        P(f's_mov_b32 s{sT0}, {base + k*1024}')
        if acc:
            P(f'v_accvgpr_read_b32 v254, a{r}\ns_nop 1\nbuffer_store_dword v254, v253, s[{SRD_WS}:{SRD_WS+3}], s{sT0} offen')
        else:
            P(f'buffer_store_dword v{r}, v253, s[{SRD_WS}:{SRD_WS+3}], s{sT0} offen')
    P('s_waitcnt vmcnt(0)')

def dump_lds(P, off, nbytes, base):
    P('v_mbcnt_lo_u32_b32 v253, -1, 0\nv_mbcnt_hi_u32_b32 v253, -1, v253')
    P(f's_lshl_b32 s{sT0}, s{sW}, 6\nv_add_u32 v253, s{sT0}, v253\nv_lshlrev_b32 v253, 2, v253')
    P(f'v_add_u32 v252, {off}, v253')
    for k in range(nbytes // 1024):
        P(f'ds_read_b32 v254, v252 offset:{k*1024}\ns_waitcnt lgkmcnt(0)\ns_mov_b32 s{sT0}, {base + k*1024}')
        P(f'buffer_store_dword v254, v253, s[{SRD_WS}:{SRD_WS+3}], s{sT0} offen\ns_waitcnt vmcnt(0)')

def main():
    P = Prog(); stats = {}
    kname = NAME + '_kernel'
    P.label(kname)
    setup(P); lane_consts(P)
    qproj(P, stats)
    if DEBUG == 'q':
        dump_regs(P, list(range(128)))
        dump_lds(P, Q9B, 16384, 131072)
        P('s_endpgm')
    else:
        attention(P, stats)
        ep = epilogue(P)
        if DEBUG == 'o':
            dump_regs(P, list(range(256)), acc=True)
            dump_regs(P, list(range(vO9, vO9 + 32)) + vL + ep[4], base=262144)
            P('s_endpgm')
        else:
            normalise(P, *ep)
            outproj(P, stats)
            P('s_endpgm')
    lines, nfix = check_hazards(P.lines, verbose=bool(OPT.get('v')))
    check_waits(lines)
    R = Prog(); reduce_kernel(R)
    rl, nf2 = check_hazards(R.lines)
    check_waits(rl)
    print('stats', stats, 'hazard nops', nfix, nf2, 'instrs', len(lines), file=sys.stderr)
    out = [HEADER.rstrip('\n')]
    if DEBUG:
        out.append(f'; @launch kernel={kname} grid=(256,1,1) block=(256,1,1) lds={LDS_TOTAL}')
    else:
        out.append(f'; @launch kernel={kname} grid=(256,1,1) block=(256,1,1) lds={LDS_TOTAL}')
        out.append(f'; @launch kernel=reduce_kernel grid=(1008,1,1) block=(256,1,1) lds=0')
    out.append('.amdgcn_target "amdgcn-amd-amdhsa--gfx950"\n.text')
    out.append(f'.globl {kname}\n.p2align 8\n.type {kname},@function')
    out += lines
    out.append('.globl reduce_kernel\n.p2align 8\n.type reduce_kernel,@function')
    out += rl
    out.append('.section .rodata,"a"')
    for nm, vg, acc, sg in ((kname, 512, 256, 96), ('reduce_kernel', 80, 80, 32)):
        out.append(f""".p2align 6
.amdhsa_kernel {nm}
  .amdhsa_next_free_vgpr {vg}
  .amdhsa_next_free_sgpr {sg}
  .amdhsa_accum_offset {acc}
  .amdhsa_group_segment_fixed_size 0
  .amdhsa_kernarg_size 104
  .amdhsa_user_sgpr_count 2
  .amdhsa_user_sgpr_kernarg_segment_ptr 1
  .amdhsa_system_sgpr_workgroup_id_x 1
.end_amdhsa_kernel""")
    dst = OPT.get('o', 'cdna_kernels/' + NAME + '.s')
    open(dst, 'w').write('\n'.join(out) + '\n')

main()
```

```python
import re

class Prog:
    def __init__(self):
        self.lines = []
    def __call__(self, s):
        for l in s.split('\n'):
            l = l.strip()
            if l: self.lines.append(l)
    def label(self, name): self.lines.append(name + ':')
    def text(self): return '\n'.join(self.lines) + '\n'

RE_REG = re.compile(r'(?<![\w.])([vas])(\d+)\b|(?<![\w.])([vas])\[(\d+):(\d+)\]')
def regs_of(tok):
    tok = tok.strip()
    m = re.fullmatch(r'-?\|?([vas])(\d+)\|?', tok)
    if m: return [(m.group(1), int(m.group(2)))]
    m = re.fullmatch(r'([vas])\[(\d+):(\d+)\]', tok)
    if m: return [(m.group(1), i) for i in range(int(m.group(2)), int(m.group(3)) + 1)]
    if tok == 'vcc': return [('s', 106), ('s', 107)]
    if tok == 'm0': return [('s', 124)]
    if tok == 'exec': return [('s', 126), ('s', 127)]
    return []

TRANS = ('v_exp_f32', 'v_log_f32', 'v_rcp_f32', 'v_rsq_f32', 'v_sqrt_f32')

class Ins:
    __slots__ = ('op', 'ops', 'defs', 'uses', 'kind', 'text', 'srcc', 'nop', 'ab')
    def __init__(self, text):
        self.text = text
        t = text.split(';')[0].strip()
        parts = t.split(None, 1)
        self.op = parts[0]
        rest = parts[1] if len(parts) > 1 else ''
        ops = [o.strip() for o in rest.split(',')] if rest else []
        if ops:
            last = ops[-1].split()
            mods = last[1:]
            ops[-1] = last[0] if last else ''
        self.ops = ops
        self.defs = []; self.uses = []; self.srcc = []; self.ab = []; self.nop = 1
        op = self.op
        if op.startswith('v_mfma'):
            self.kind = 'mfma'
            self.defs = regs_of(ops[0]); self.ab = regs_of(ops[1]) + regs_of(ops[2]); self.srcc = regs_of(ops[3])
            self.uses = self.ab + self.srcc
        elif op.startswith('ds_read') :
            self.kind = 'dsr'; self.defs = regs_of(ops[0]); self.uses = regs_of(ops[1])
        elif op.startswith('ds_write') or op.startswith('ds_add') or op.startswith('ds_max'):
            self.kind = 'dsw'; self.uses = [r for o in ops for r in regs_of(o)]
        elif op.startswith('buffer_load') or op.startswith('global_load'):
            if ' lds' in t or op.startswith('global_load_lds'):
                self.kind = 'dma'; self.uses = [r for o in ops for r in regs_of(o)] + [('s', 124)]
            else:
                self.kind = 'vld'; self.defs = regs_of(ops[0]); self.uses = [r for o in ops[1:] for r in regs_of(o)]
        elif op.startswith('buffer_store') or op.startswith('global_store') or op.startswith('buffer_atomic') or op.startswith('global_atomic'):
            self.kind = 'vst'; self.uses = [r for o in ops for r in regs_of(o)]
        elif op == 's_nop':
            self.kind = 'nop'; self.nop = int(ops[0], 0) + 1
        elif op == 's_waitcnt':
            self.kind = 'wait'
        elif op in ('s_barrier', 's_endpgm', 's_setprio') or op.startswith('s_branch') or op.startswith('s_cbranch'):
            self.kind = 'ctl'
        elif op.startswith('s_'):
            self.kind = 'salu'
            if op.startswith('s_cmp') or op.startswith('s_bitcmp'):
                self.uses = [r for o in ops for r in regs_of(o)]
            else:
                self.defs = regs_of(ops[0]); self.uses = [r for o in ops[1:] for r in regs_of(o)]
        elif op.startswith('v_'):
            self.kind = 'valu'
            if op.startswith('v_cmp'):
                self.defs = regs_of(ops[0]); self.uses = [r for o in ops[1:] for r in regs_of(o)]
            elif op.startswith('v_permlane') and 'swap' in op:
                self.defs = regs_of(ops[0]) + regs_of(ops[1]); self.uses = list(self.defs)
            elif op in ('v_add_co_u32', 'v_addc_co_u32'):
                self.defs = regs_of(ops[0]) + regs_of(ops[1]); self.uses = [r for o in ops[2:] for r in regs_of(o)]
            elif op in ('v_readfirstlane_b32', 'v_readlane_b32'):
                self.defs = regs_of(ops[0]); self.uses = [r for o in ops[1:] for r in regs_of(o)]
            else:
                self.defs = regs_of(ops[0]); self.uses = [r for o in ops[1:] for r in regs_of(o)]
                if op.startswith('v_fmac') or op.startswith('v_cndmask') and len(ops) == 3:
                    self.uses += self.defs if op.startswith('v_fmac') else [('s',106),('s',107)]
                if op.startswith('v_cndmask') and 'vcc' in t: self.uses += [('s',106),('s',107)]
        else:
            raise ValueError('unknown op ' + text)

def mfma_passes(op):
    if '16x16x32' in op: return 4
    if '32x32x16' in op: return 8
    raise ValueError(op)

def check_hazards(lines, fix=True, verbose=False):
    out = []
    hist = []
    pos = 0
    nfix = 0
    for l in lines:
        if l.startswith(';') or l.endswith(':') or l.startswith('.'):
            out.append(l); continue
        I = Ins(l)
        need = 0
        why = None
        for (P, ppos) in reversed(hist):
            dist = pos - ppos - P.nop
            dist = pos - (ppos + P.nop)
            if dist >= 20: break
            req = 0
            pd = set(P.defs)
            if P.kind == 'valu':
                pv = {r for r in pd if r[0] in 'va'}
                ps = {r for r in pd if r[0] == 's'}
                if I.kind == 'mfma' and pv & set(I.uses): req = max(req, 2)
                if P.op in TRANS and I.kind == 'valu' and I.op not in TRANS and pv & set(I.uses): req = max(req, 1)
                if P.op in TRANS and I.kind in ('valu',) and I.op in TRANS and pv & set(I.uses): req = max(req, 1)
                if I.op.startswith('v_permlane') and pv & set(I.uses): req = max(req, 2)
                if I.op in ('v_readfirstlane_b32', 'v_readlane_b32') and pv & set(I.uses): req = max(req, 1)
                if ps:
                    if I.kind in ('vld', 'vst', 'dma') and ps & set(I.uses): req = max(req, 5)
                    if I.kind == 'valu' and ps & set(I.uses): req = max(req, 2)
                    if I.kind == 'salu' and ps & set(I.uses): req = max(req, 2)
            if P.kind == 'mfma':
                n = mfma_passes(P.op)
                full = {4: 8, 8: 12}[n]
                if I.kind == 'mfma':
                    if pd & set(I.ab): req = max(req, full)
                    if pd & set(I.srcc):
                        if not (I.srcc == P.defs and mfma_passes(I.op) == n): req = max(req, {4: 6, 8: 10}[n])
                    if pd & set(I.defs) and not (pd & set(I.srcc)): req = max(req, 0)
                elif I.kind in ('valu', 'dsw', 'vst', 'dsr', 'vld', 'dma'):
                    if pd & (set(I.uses) | set(I.defs)): req = max(req, full)
                if I.kind == 'valu' and set(P.srcc) & set(I.defs): req = max(req, {4: 3, 8: 7}[n])
            if P.kind == 'salu' and ('s', 124) in pd and I.kind == 'dma': req = max(req, 1)
            if P.kind == 'vst' and ('x4' in P.op or 'x3' in P.op) and I.kind in ('valu',):
                data = set(regs_of(P.ops[0])) if P.op.startswith('buffer') else set(regs_of(P.ops[1]))
                if data & set(I.defs): req = max(req, 2)
            if req > dist and req - dist > need:
                need = req - dist; why = (P.text, I.text, req, dist)
        if need > 0:
            if not fix: raise AssertionError(f'hazard {why}')
            nfix += 1
            if verbose: print('hazard fix', why)
            k = need
            while k > 0:
                c = min(k, 16)
                nop = Ins(f's_nop {c-1}')
                out.append(nop.text); hist.append((nop, pos)); pos += c; k -= c
        out.append(l); hist.append((I, pos)); pos += I.nop
        if len(hist) > 40: hist = hist[-40:]
    return out, nfix

def check_waits(lines):
    lg = []
    vm = []
    for idx, l in enumerate(lines):
        if l.startswith(';') or l.endswith(':') or l.startswith('.'): continue
        I = Ins(l)
        if I.op in ('s_branch', 's_endpgm'):
            lg = []; vm = []
            continue
        if I.kind == 'wait':
            m = re.search(r'lgkmcnt\((\d+)\)', l)
            if m:
                n = int(m.group(1))
                if len(lg) > n: lg = lg[len(lg) - n:] if n > 0 else []
            m = re.search(r'vmcnt\((\d+)\)', l)
            if m:
                n = int(m.group(1))
                if len(vm) > n: vm = vm[len(vm) - n:] if n > 0 else []
            continue
        touched = set(I.uses) | set(I.defs)
        for q, name in ((lg, 'lgkm'), (vm, 'vm')):
            for d, txt in q:
                if d & touched:
                    raise AssertionError(f'line {idx}: "{l}" touches regs of outstanding {name} op "{txt}"')
        if I.kind in ('dsr', 'dsw'): lg.append((set(I.defs), l))
        elif I.op.startswith('s_load'): lg.append((set(I.defs), l))
        elif I.kind in ('vld', 'vst', 'dma'): vm.append((set(I.defs), l))
        if len(lg) > 15 and any(d for d,_ in lg[:len(lg)-15]):
            pass
    return True
```

```python
class Frag:
    def __init__(s, kind, addr, imm, pool=None, regs=None, imm2=None, addr2=None, acc=False):
        s.kind = kind; s.addr = addr; s.imm = imm; s.pool = pool; s.regs = regs
        s.imm2 = imm2; s.addr2 = addr2; s.acc = acc
    def instrs(s):
        r = s.regs; f = 'a' if s.acc else 'v'
        if s.kind == 'b128':
            return [f'ds_read_b128 {f}[{r}:{r+3}], v{s.addr} offset:{s.imm}']
        if s.kind == 'tr':
            a2 = s.addr2 if s.addr2 is not None else s.addr
            return [f'ds_read_b64_tr_b16 {f}[{r}:{r+1}], v{s.addr} offset:{s.imm}',
                    f'ds_read_b64_tr_b16 {f}[{r+2}:{r+3}], v{a2} offset:{s.imm2}']
        raise ValueError

class Item:
    def __init__(s, frags, mf, nm, tag=None, hold=None):
        s.frags = frags; s.mf = mf; s.nm = nm; s.tag = tag; s.hold = hold or []

def kind_of(t):
    if t.startswith(('v_exp', 'v_rcp', 'v_permlane', 'buffer_', 'ds_', 'global_')): return 'x'
    if t.startswith('s_'): return 'u'
    return 's'

class Task:
    def __init__(s, text, ready=0, due=10**9, deps=(), gdeps=(), prio=0):
        s.text = text; s.ready = ready; s.due = due; s.deps = list(deps); s.gdeps = list(gdeps)
        s.kind = kind_of(text); s.at = None; s.prio = prio

def chain(texts, ready=0, due=10**9, sepfn=None, first_deps=()):
    out = []
    for t in texts:
        d = [out[-1]] if out else list(first_deps)
        if sepfn is not None and out and sepfn(t): out.append(Task(t, ready, due, gdeps=d))
        else: out.append(Task(t, ready, due, deps=d))
    return out

def mstarts(items):
    st = []; c = 0
    for it in items: st.append(c); c += it.nm
    return st, c

def schedule(P, items, tasks, entry=(), exitf=(), lead=14, urgent=8, age=6, stats=None, burst=0, vmlog=None, xstep=4):
    n = len(items)
    entry = list(entry)
    tasks = list(tasks)
    for ii, it in enumerate(items):
        for f in it.frags: f.first = ii; f.last = ii
    for ii, it in enumerate(items):
        for f in it.hold: f.last = max(f.last, ii)
    for k, f in enumerate(exitf): f.first = n + k; f.last = n + k
    occ = {}
    allfr = [f for it in items for f in it.frags] + list(exitf)
    for f in entry: occ[f.regs] = f.last; f.prev_last = -1
    xregs = set(f.regs for f in exitf)
    free_fr = [f for f in allfr if f.regs is None]
    for f in allfr:
        if any(f is e for e in entry): continue
        if f.regs is None:
            pool = f.pool
            other = [b for b in pool if b not in xregs]
            if xregs and other and free_fr.index(f) >= len(free_fr) - len(other): pool = other
            f.regs = min(pool, key=lambda b: (occ.get(b, -1), f.pool.index(b)))
        f.prev_last = occ.get(f.regs, -1)
        assert f.prev_last < f.first, ('pool too small', f.first, f.prev_last)
        occ[f.regs] = f.last
    ms = [it.mf() for it in items]
    for it, m in zip(items, ms): assert len(m) == it.nm
    mstart = []; c = 0
    for m in ms: mstart.append(c); c += len(m)
    NM = c
    mend = [mstart[i] + len(ms[i]) - 1 for i in range(n)]
    def cstart(f): return mstart[f.first] if f.first < n else NM + xstep * (f.first - n)
    ds = []
    for f in allfr:
        if any(f is e for e in entry): continue
        for t in f.instrs(): ds.append((f, t))
    lgq = []; issue_at = {}; last_ds_idx = {}
    for k, f in enumerate(entry):
        for t in f.instrs(): lgq.append(f)
        issue_at[id(f)] = -2 * (len(entry) - k) - 1; last_ds_idx[id(f)] = -1
    for k, (f, t) in enumerate(ds): last_ds_idx[id(f)] = k
    st = {'dsi': 0}
    covered = set()
    S = stats if stats is not None else {}
    def inc(k, v=1): S[k] = S.get(k, 0) + v
    def emit_ds(m):
        f, t = ds[st['dsi']]; P(t); lgq.append(f); issue_at[id(f)] = m; st['dsi'] += 1
    def ds_ok(m):
        if st['dsi'] >= len(ds): return False
        f, t = ds[st['dsi']]
        if f.prev_last >= 0 and mend[f.prev_last] > m: return False
        if cstart(f) - m > lead: return False
        if len(lgq) >= 14: return False
        return True
    def ds_slack(m): return cstart(ds[st['dsi']][0]) - m
    def wait_for(ii, m, pre):
        need = [f for f in items[ii].frags if id(f) not in covered]
        if not need: return
        while any(st['dsi'] <= last_ds_idx[id(f)] for f in need):
            emit_ds(m); inc('forced_ds')
        tgt = list(need)
        for j in range(ii + 1, min(n, ii + 6)):
            ok = True
            for f in items[j].frags:
                if id(f) in covered: continue
                if st['dsi'] <= last_ds_idx[id(f)] or m - issue_at[id(f)] < age: ok = False
            if not ok: break
            tgt += [f for f in items[j].frags if id(f) not in covered]
        last = max(i for i, x in enumerate(lgq) if x is not None and any(x is f for f in tgt))
        cnt = len(lgq) - 1 - last
        assert cnt <= 15, cnt
        P(f's_waitcnt lgkmcnt({cnt})'); inc('waits')
        young = min(m - issue_at[id(f)] for f in need)
        if young < 5: inc('short_waits')
        for x in lgq[:last + 1]:
            if x is not None: covered.add(id(x))
        del lgq[:last + 1]
    def avail(t, m):
        if t.at is not None or t.ready > m: return False
        for d in t.deps:
            if d.at is None: return False
        for d in t.gdeps:
            if d.at is None or d.at >= m: return False
        return True
    def pick(m, kinds):
        best = None
        for t in tasks:
            if t.kind in kinds and avail(t, m):
                if best is None or (t.due, t.prio) < (best.due, best.prio): best = t
        return best
    def take(t, m):
        P(t.text); t.at = m
        if vmlog is not None and t.text.startswith(('buffer_', 'global_')): vmlog.append(getattr(t, 'tag', 'x'))
        if t.text.startswith('ds_'): lgq.append(None)
    if burst:
        nb = 0
        g = -1000
        while st['dsi'] < len(ds) and len(lgq) < 14 and nb < burst * 2:
            f = ds[st['dsi']][0]
            if f.prev_last >= 0 or f.first >= n: break
            emit_ds(-1); nb += 1
            t = pick(-1, 'sxu') if False else None
            cand = [t for t in tasks if t.at is None and t.ready < 0 and all(d.at is not None for d in t.deps + t.gdeps)]
            if cand:
                t = min(cand, key=lambda t: (t.due, t.prio)); take(t, g); g += 1
        while True:
            cand = [t for t in tasks if t.at is None and t.ready < 0 and all(d.at is not None for d in t.deps + t.gdeps)]
            if not cand: break
            t = min(cand, key=lambda t: (t.due, t.prio)); take(t, g); g += 1
    wait_for(0, -1, True)
    for ii in range(n):
        for mi, mt in enumerate(ms[ii]):
            m = mstart[ii] + mi
            P(mt)
            if mi == len(ms[ii]) - 1 and ii + 1 < n: wait_for(ii + 1, m, True)
            x = pick(m, 'x'); s1 = pick(m, 'su')
            dso = ds_ok(m)
            forced = [t for t in (x, s1) if t is not None and t.due <= m]
            use_ds = False; use_x = False
            if dso and ds_slack(m) <= urgent: use_ds = True
            elif x is not None and (s1 is None or x.due <= s1.due + 6 or not dso): use_x = True
            elif dso: use_ds = True
            elif x is not None and s1 is None: use_x = True
            both = False
            if x is not None and x.due <= m + 1:
                if use_ds and ds_slack(m) <= urgent: both = True
                use_x = True; use_ds = False
            if use_x:
                if both: emit_ds(m); inc('g_dsx')
                take(x, m); inc('g_x')
            else:
                k = 0
                if use_ds: emit_ds(m); k += 1
                while k < 2:
                    t = pick(m, 'su')
                    if t is None: break
                    take(t, m); k += 1
                if k == 2 and not use_ds:
                    pass
                inc('g_%d' % k)
            while True:
                od = [t for t in tasks if t.at is None and t.due < m and avail(t, m + 1)]
                if not od: break
                take(min(od, key=lambda t: (t.due, t.prio)), m); inc('overdue')
    g = NM + 1
    while True:
        cand = [t for t in tasks if t.at is None and all(d.at is not None for d in t.deps + t.gdeps)]
        if not cand: break
        take(min(cand, key=lambda t: (t.ready, t.due, t.prio)), g); g += 1; inc('left')
        if st['dsi'] < len(ds): emit_ds(NM)
    assert all(t.at is not None for t in tasks)
    while st['dsi'] < len(ds): emit_ds(NM)
    inc('mfma', NM)
    return lgq, mstart, mend
```

```python
import sys, struct
from asmlib import *
from sched import *

NAME = 'concat_heads__gqa_block_cached__gqa_block_cached__near_ridge'
DEBUG = ''
for a in sys.argv[1:]:
    if a.startswith('--debug='): DEBUG = a.split('=')[1]
OPT = {}
for a in sys.argv[1:]:
    if a.startswith('--') and '=' in a:
        k, v = a[2:].split('='); OPT[k] = v

KB = 0; VB = 65536; Q9B = 131072; P9B = 147456; SCR = 151552; LDS_TOTAL = 163840
W1 = 57344
PLANE = 129024
SRD_X, SRD_WQ, SRD_K, SRD_V, SRD_WO, SRD_WS = 4, 8, 12, 16, 20, 24
sW, sW1K, sKV, sCNT, sC, sT0, sT1, sT2, sT3, sX2 = 28, 29, 30, 31, 32, 33, 34, 35, 36, 37
sA, sB = 38, 39
sOFF = 40
sG = 41
sW4K = 60
sJ = 50
sPL = 51
vQ = 0; vO9 = 128; vX = [160, 176]; vY = 192; vS9 = 208; vP9f = 212; POOL = [220, 224, 228, 232]
vK = [236, 237]; vV = [238, 239, 240, 241]; vQ9 = [242, 243]; vP9r = 244; vP9w = 245; vDK = 246; vDV = 247
vL = [248, 249, 250, 251]; vL9 = 252; vT = [253, 254, 255]
vACC = [128, 160]; vACC9 = [208, 212]; PPOOL = [192, 196, 200, 204, 220, 224, 228, 232]
vW = [216, 217, 218, 219]; vDW = 253; vQ9w = 254
CSCALE = struct.unpack('<I', struct.pack('<f', 1.4426950408889634 / 16.0))[0]

PROF = OPT.get('prof')
KEND = 'R_end' if (OPT.get('pfred', '1') == '1' and OPT.get('fuse', '0') != '1') else 'L_kend'
FUSE = OPT.get('fuse', '0') == '1'
SPIN = int(OPT.get('spin', 20000))
DOT2 = OPT.get('dot2', '1') == '1'
S_DBG = 4
vONE, vZERO = 248, 249
NOWAITQ = OPT.get('nowaitq')
NTW = OPT.get('ntw', 'nt').replace('none', '')
NTKV = OPT.get('ntkv', 'nt').replace('none', '')
NTX = OPT.get('ntx', 'none').replace('none', '')
NST = [0]
def stamp(P, name):
    if not PROF: return
    if PROF != '1' and name not in PROF.split(',') and name not in ('start', 'out_done'): return
    k = NST[0]; NST[0] += 1
    assert k < 16
    P(f's_memtime s[{64+2*k}:{65+2*k}]')
    if k == 0: P('s_memrealtime s[96:97]')
    STN.append(name)
STN = []
def stamp_flush(P):
    if not PROF: return
    P('s_memrealtime s[98:99]')
    if OPT.get('dbgout'):
        P(f's_load_dwordx2 s[62:63], s[0:1], 88\ns_waitcnt lgkmcnt(0)')
        P(f's_cmp_lg_u32 s2, {OPT["dbgout"]}\ns_cbranch_scc1 L_noprof\ns_cmp_lg_u32 s{sW}, 0\ns_cbranch_scc1 L_noprof')
        P('v_mov_b32 v1, 0')
        for k in range(1, NST[0]):
            P(f's_sub_u32 s46, s{64+2*k}, s{64+2*(k-1)}\nv_mov_b32 v2, s46\nglobal_store_dword v1, v2, s[62:63] offset:{4*(k-1)}')
        P(f's_sub_u32 s46, s98, s96\nv_mov_b32 v2, s46\nglobal_store_dword v1, v2, s[62:63] offset:60')
        P('s_waitcnt vmcnt(0)')
        P.label('L_noprof')
        return
    P(f's_load_dwordx2 s[62:63], s[0:1], 96\ns_waitcnt lgkmcnt(0)')
    P(f's_lshl_b32 s46, s2, 8\ns_add_u32 s46, s46, {200*1024*1024}\ns_add_u32 s62, s62, s46\ns_addc_u32 s63, s63, 0')
    P(f's_cmp_lg_u32 s{sW}, 0\ns_cbranch_scc1 L_noprof')
    P('v_mov_b32 v1, 0')
    for k in range(NST[0]):
        P(f'v_mov_b32 v2, s{64+2*k}\nglobal_store_dword v1, v2, s[62:63] offset:{128+4*k}')
    P(f'v_mov_b32 v2, s96\nglobal_store_dword v1, v2, s[62:63] offset:0')
    P(f'v_mov_b32 v2, s98\nglobal_store_dword v1, v2, s[62:63] offset:4')
    P('s_waitcnt vmcnt(0)')
    P.label('L_noprof')

def final_lgkm(lgq, exitf):
    n = 0
    for x in reversed(lgq):
        if x is not None and any(x is f for f in exitf): n += 1
        else: break
    return min(n, 15)

class VMQ:
    def __init__(s): s.q = []
    def issue(s, tag, n): s.q += [tag] * n
    def need(s, tags):
        last = -1
        for i, t in enumerate(s.q):
            if t in tags: last = i
        n = len(s.q) - 1 - last
        s.q = s.q[last + 1:]
        return n
VM = VMQ()

def srd(P, s, base_lo, base_hi, size):
    P(f's_mov_b32 s{s}, s{base_lo}\ns_and_b32 s{s+1}, s{base_hi}, 0xffff\ns_mov_b32 s{s+2}, {size}\ns_mov_b32 s{s+3}, 0x20000')

def setup(P):
    P(f'''
s_cmp_ge_u32 s2, 256
s_cbranch_scc0 L_go
s_endpgm
L_go:
s_lshr_b32 s42, s2, 1
s_and_b32 s42, s42, 1
s_lshr_b32 s43, s2, 3
s_and_b32 s43, s43, 3
s_lshl_b32 s43, s43, 1
s_or_b32 s42, s42, s43
s_lshr_b32 s44, s2, 2
s_and_b32 s44, s44, 1
s_lshr_b32 s47, s2, 5
s_lshl_b32 s45, s47, 1
s_and_b32 s43, s2, 1
s_or_b32 s45, s45, s43
s_mov_b32 s{sJ}, s47
s_lshl_b32 s43, s44, 4
s_add_u32 s43, s43, s45
s_lshl_b32 s43, s43, 3
s_add_u32 s43, s43, s42
s_mov_b32 s{sPL}, s43
s_mul_i32 s46, s44, 40
s_add_u32 s48, s0, s46
s_addc_u32 s49, s1, 0
s_load_dwordx8 s[52:59], s[48:49], 0
s_load_dwordx2 s[60:61], s[48:49], 32
s_load_dwordx2 s[62:63], s[0:1], 96
v_lshrrev_b32 v1, 6, v0
v_and_b32 v2, 63, v0
s_nop 0
v_readfirstlane_b32 s{sW}, v1
''')
    if OPT.get('codefirst', '1') == '1':
        P('s_getpc_b64 s[64:65]')
        P.label('L_pc')
        P(f's_lshr_b32 s66, s2, 3\ns_lshl_b32 s66, s66, 12\ns_lshl_b32 s67, s{sW}, 10\ns_add_u32 s66, s66, s67')
        P(f's_min_u32 s66, s66, {KEND}-L_pc-1024')
        P(f'v_lshlrev_b32 v16, 4, v2\nv_add_u32 v16, s66, v16\nv_mov_b32 v17, s65\nv_add_co_u32 v16, vcc, s64, v16\ns_nop 1\nv_addc_co_u32 v17, vcc, 0, v17, vcc')
        P('global_load_dwordx4 v[20:23], v[16:17], off')
        VM.issue('warm', 1)
    P('s_waitcnt lgkmcnt(0)')
    P(f's_mul_i32 s46, s45, 129024\ns_add_u32 s52, s52, s46\ns_addc_u32 s53, s53, 0')
    srd(P, SRD_X, 52, 53, 129024)
    P(f's_lshl_b32 s46, s45, 3\ns_add_u32 s46, s46, s42\ns_lshr_b32 s47, s46, 13\ns_lshl_b32 s46, s46, 19')
    P(f's_add_u32 s54, s54, s46\ns_addc_u32 s55, s55, s47')
    srd(P, SRD_K, 54, 55, 524288)
    P(f's_add_u32 s56, s56, s46\ns_addc_u32 s57, s57, s47')
    P(f's_sub_u32 s56, s56, 16384\ns_subb_u32 s57, s57, 0')
    srd(P, SRD_V, 56, 57, 524288 + 16384)
    P(f's_lshl_b32 s46, s42, 10\ns_add_u32 s58, s58, s46\ns_addc_u32 s59, s59, 0')
    srd(P, SRD_WQ, 58, 59, 0)
    P(f's_sub_u32 s{SRD_WQ+2}, {448*8192}, s46')
    P(f's_mul_i32 s46, s42, 458752\ns_add_u32 s60, s60, s46\ns_addc_u32 s61, s61, 0')
    srd(P, SRD_WO, 60, 61, 458752)
    stride = PLANE if not DEBUG else 1048576
    P(f's_mul_i32 s46, s{sPL}, {stride}\ns_add_u32 s62, s62, s46\ns_addc_u32 s63, s63, 0')
    srd(P, SRD_WS, 62, 63, stride)
    P(f'''
s_lshl_b32 s{sW1K}, s{sW}, 10
s_lshr_b32 s{sA}, s{sW}, 1
s_and_b32 s{sB}, s{sW}, 1
s_mov_b32 s{sC}, {CSCALE}
s_mov_b32 s{sX2}, 14336
s_mov_b32 s49, 0
''')
    P('v_and_b32 v3, 15, v2\nv_lshrrev_b32 v4, 4, v2')

def lane_consts(P):
    P(f's_lshl_b32 s{sT0}, s{sB}, 1')
    P(f'v_xor_b32 v5, s{sT0}, v4')
    P(f'v_lshrrev_b32 v6, 1, v3')
    P(f'v_xor_b32 v6, v5, v6')
    P(f's_lshl_b32 s{sT1}, s{sA}, 2')
    P(f'v_xor_b32 v7, s{sT1}, v6')
    P(f'v_lshlrev_b32 v7, 4, v7\nv_lshlrev_b32 v8, 7, v3')
    P(f'v_add_u32 v{vK[0]}, v7, v8\nv_xor_b32 v{vK[1]}, 64, v{vK[0]}')
    P(f'v_lshlrev_b32 v7, 4, v5\nv_add_u32 v7, v7, v3\nv_lshlrev_b32 v7, 4, v7')
    P(f's_mul_i32 s{sT1}, s{sA}, {8192+1024}\ns_add_u32 s{sT1}, s{sT1}, {Q9B}')
    P(f'v_add_u32 v{vQ9[0]}, s{sT1}, v7\nv_xor_b32 v{vQ9[1]}, 0x400, v{vQ9[0]}')
    P('v_lshrrev_b32 v9, 2, v3')
    P('v_lshrrev_b32 v10, 1, v3\nv_and_b32 v10, 1, v10')
    P('v_and_b32 v11, 1, v3\nv_lshlrev_b32 v11, 3, v11')
    P('v_lshlrev_b32 v12, 2, v4\nv_add_u32 v12, v12, v9')
    P('v_and_b32 v13, 6, v12')
    P(f's_lshl_b32 s{sT1}, s{sW}, 1')
    P(f'v_xor_b32 v14, s{sT1}, v10')
    P('v_xor_b32 v14, v14, v13\nv_lshlrev_b32 v14, 4, v14')
    P('v_lshlrev_b32 v15, 7, v12\nv_add_u32 v14, v14, v15\nv_add_u32 v14, v14, v11')
    P(f'v_add_u32 v{vV[0]}, {VB}, v14')
    for u in (1, 2, 3): P(f'v_xor_b32 v{vV[u]}, {u*32}, v{vV[0]}')
    P('v_lshlrev_b32 v12, 3, v4\nv_add_u32 v12, v12, v9')
    P('v_and_b32 v13, 2, v9\nv_and_b32 v15, 1, v4\nv_lshlrev_b32 v15, 2, v15\nv_or_b32 v13, v13, v15')
    P(f'v_xor_b32 v14, s{sT1}, v10\nv_xor_b32 v14, v14, v13\nv_lshlrev_b32 v14, 4, v14')
    P(f'v_lshlrev_b32 v15, 7, v12\nv_add_u32 v14, v14, v15\nv_add_u32 v{vW[0]}, v14, v11')
    for u in (1, 2, 3): P(f'v_xor_b32 v{vW[u]}, {u*32}, v{vW[0]}')
    P(f'v_lshlrev_b32 v7, 4, v2\nv_add_u32 v{vP9r}, {P9B}, v7')
    P(f's_lshl_b32 s{sT0}, s{sA}, 10\ns_lshl_b32 s{sT1}, s{sB}, 3\ns_add_u32 s{sT0}, s{sT0}, s{sT1}')
    P(f'v_add_u32 v{vP9w}, s{sT0}, v{vP9r}')
    P(f's_lshl_b32 s{sT0}, s{sB}, 1\nv_lshrrev_b32 v7, 1, v4\nv_add_u32 v7, s{sT0}, v7\nv_lshlrev_b32 v7, 4, v7\nv_add_u32 v7, v7, v3\nv_lshlrev_b32 v7, 4, v7')
    P(f'v_and_b32 v8, 1, v4\nv_lshlrev_b32 v8, 3, v8\nv_add_u32 v7, v7, v8')
    P(f's_lshl_b32 s{sT0}, s{sA}, 10\ns_add_u32 s{sT0}, s{sT0}, {Q9B}\nv_add_u32 v{vQ9w}, s{sT0}, v7')
    P('v_lshrrev_b32 v7, 3, v2\nv_and_b32 v8, 7, v2')
    P(f's_lshl_b32 s{sT0}, s{sB}, 2\nv_add_u32 v9, s{sT0}, v4\nv_xor_b32 v9, v8, v9\nv_lshlrev_b32 v9, 4, v9\nv_lshlrev_b32 v12, 9, v7')
    P(f's_lshl_b32 s{sT1}, s{sW}, 12\nv_add_u32 v12, s{sT1}, v12\nv_add_u32 v{vDK}, v9, v12')
    P(f'v_and_b32 v9, 6, v7\nv_xor_b32 v9, v8, v9\nv_lshlrev_b32 v9, 4, v9\nv_add_u32 v{vDV}, v9, v12')
    P(f'v_and_b32 v9, 2, v7\nv_or_b32 v9, s{sT0}, v9\nv_xor_b32 v9, v8, v9\nv_lshlrev_b32 v9, 4, v9\nv_lshlrev_b32 v12, 13, v7')
    P(f's_lshl_b32 s{sT1}, s{sW}, 16\nv_add_u32 v12, s{sT1}, v12\nv_add_u32 v{vDW}, v9, v12')

def dmaW(g):
    hh, cb = g >> 2, g & 3
    buf = (g & 1) * W1
    L = []
    for j in range(14):
        L.append(f's_add_u32 m0, s{sW1K}, {buf + j*4096}')
        L.append(f's_mov_b32 s{sOFF}, {j*262144 + hh*512 + cb*128}')
        L.append(f'buffer_load_dwordx4 v{vDW}, s[{SRD_WQ}:{SRD_WQ+3}], s{sOFF} offen {NTW} lds')
    return L

def dmaKV(which, tile_soff_reg, slot):
    base = (KB if which == 'K' else VB) + slot * 16384
    srdv = SRD_K if which == 'K' else SRD_V
    vo = vDK if which == 'K' else vDV
    L = []
    for cb in range(4):
        L.append(f's_add_u32 m0, s{sW1K}, {base + cb*4096 - cb*128}')
        L.append(f'buffer_load_dwordx4 v{vo}, s[{srdv}:{srdv+3}], s{tile_soff_reg} offen offset:{cb*128} {NTKV} lds')
    return L

vWM = 255
DUMMY = 163840 - 2048
WARM = OPT.get('warm', '0') == '1'
def warm_wq():
    L = [f's_mov_b32 m0, {DUMMY + 1024}']
    for i in range(4):
        L.append(f's_lshl_b32 s{sT2}, s{sT3}, 13' if False else f's_add_u32 s{sT2}, s{sT3}, {i*16*8192}')
        L.append(f'buffer_load_dword v{vWM}, s[{SRD_WQ}:{SRD_WQ+3}], s{sT2} offen nt lds')
    return L
def warm_lin(srdv, sbase, n, step, nt='nt'):
    L = [f's_mov_b32 m0, {DUMMY + 1024}']
    for i in range(n):
        L.append(f's_add_u32 s{sT2}, s{sbase}, {i*step}')
        L.append(f'buffer_load_dword v{vWM}, s[{srdv}:{srdv+3}], s{sT2} offen {nt} lds')
    return L

def xa(qt, ks): return (ks * 2 + qt) * 4
def x9a(ks): return 112 + ks * 4
def Qr(qt, s): return vQ + (qt * 8 + s) * 4
MF = 'v_mfma_f32_16x16x32_bf16'

def conv_tasks(g, NM=None):
    hh, cb = g >> 2, g & 3
    A = vACC[g & 1]; A9 = vACC9[g & 1]
    T = []
    due = (NM - 6) if NM else 10**9
    npre = int(OPT.get('npre', 12))
    def add(txt, deps=(), gdeps=()):
        t = Task(txt, ready=2, due=due, deps=deps, gdeps=gdeps, prio=len(T)); T.append(t); return t
    for qt in range(2):
        for vp in range(2):
            q = Qr(2 * hh + qt, 2 * cb + vp)
            cv = []
            for e in range(2):
                t = A + ((2 * vp + e) * 2 + qt) * 4
                mu = [add(f'v_mul_f32 v{t+r}, s{sC}, v{t+r}') for r in range(4)]
                cv.append(add(f'v_cvt_pk_bf16_f32 v{q+2*e}, v{t}, v{t+1}', deps=mu[:2]))
                cv.append(add(f'v_cvt_pk_bf16_f32 v{q+2*e+1}, v{t+2}, v{t+3}', deps=mu[2:]))
            a = add(f'v_permlane32_swap_b32 v{q}, v{q+2}', gdeps=[cv[0], cv[2], cv[3]])
            b = add(f'v_permlane32_swap_b32 v{q+1}, v{q+3}', gdeps=[cv[1], cv[3], a])
            c = add(f'v_permlane16_swap_b32 v{q}, v{q+2}', gdeps=[a, b])
            d = add(f'v_permlane16_swap_b32 v{q+1}, v{q+3}', gdeps=[b, c])
    mu = [add(f'v_mul_f32 v{A9+r}, s{sC}, v{A9+r}') for r in range(4)]
    c0 = add(f'v_cvt_pk_bf16_f32 v{A9}, v{A9}, v{A9+1}', deps=mu[:2])
    c1 = add(f'v_cvt_pk_bf16_f32 v{A9+1}, v{A9+2}, v{A9+3}', deps=mu[2:] + [c0])
    add(f'ds_write_b64 v{vQ9w}, v[{A9}:{A9+1}] offset:{hh*8192+cb*2048}', deps=[c0, c1])
    if NM is None: return [t.text for t in T]
    return T

XSPLIT = OPT.get('xsplit', '0') == '1'
XDEFER = OPT.get('xdefer', '1')
XDEFER = {'0': 0, '1': 1, '2': 2}[XDEFER]
X2L = []
XNODUP = OPT.get('xnodup', '1') == '1'
E0 = int(OPT.get('e0', 3))
HS = 28672
WS0 = 131072
XS = 18432
sWJ = [52, 53, 54, 55, 56, 57, 58, 59]
vW2 = [248, 249, 250, 251]; vDWc = 252
APOOL = OPT.get('apool', '1') == '1'
if APOOL: PPOOL = [176, 180, 192, 196, 208, 212, 224, 228, 240, 244][:int(OPT.get('npool', 10))]
AF = 'a' if APOOL else 'v'
NPE = int(OPT.get('npe', 5))
PENTRY = PPOOL[:NPE]

def dmaWh(h, with_v=True):
    g_, p = h >> 1, h & 1
    hh, cb = g_ >> 2, g_ & 3
    base = WS0 if (h == 0 or (XSPLIT and h == 2)) else (h & 3) * HS
    L = [f'v_add_u32 v{vDWc}, {p*224*8192 + hh*512 + cb*128}, v{vDW}']
    for j in range(7):
        L.append(f's_add_u32 m0, s{sW1K}, {base + j*4096}')
        L.append(f'buffer_load_dwordx4 v{vDWc}, s[{SRD_WQ}:{SRD_WQ+3}], s{sWJ[j]} offen {NTW} lds')
    return L

def w_frag(h, ksl, up, regs=None):
    if h == 0 or (XSPLIT and h == 2): a, imm = vW2[up], ksl * 4096
    else:
        sl = h & 3
        a = vW[up] if sl < 2 else vW2[up]
        imm = (sl & 1) * HS + ksl * 4096
    return Frag('tr', a, imm, pool=PPOOL, imm2=imm + 512, regs=regs, acc=APOOL)

def spread(ch, lo, hi):
    vm = [t for t in ch if t.text.startswith('buffer')]
    n = len(vm); k = 0
    pos = [lo + (hi - lo) * i // max(n, 1) for i in range(n)]
    for t in ch:
        j = min(k, n - 1)
        t.ready = max(0, pos[j] - (0 if t.text.startswith('buffer') else 2)); t.due = pos[j] + 5
        if t.text.startswith('buffer'): k += 1
    return ch

def qproj(P, stats):
    P.lines.append('; ---- Q projection: x staged through LDS into B fragments (AGPRs), 16 half-stages of wq')
    sepb = lambda t: t.startswith('buffer')
    for j in range(7): P(f's_mov_b32 s{sWJ[j]}, {j*32*8192}')
    P(f's_lshl_b32 s{sW4K}, s{sW}, 12\nv_lshlrev_b32 v{vWM}, 4, v2')
    if WARM:
        P(f'v_lshlrev_b32 v{vWM}, 13, v4\nv_lshlrev_b32 v6, 6, v3\nv_add_u32 v{vWM}, v{vWM}, v6')
        P(f's_mul_i32 s{sT3}, s{sJ}, 56\ns_lshl_b32 s{sT2}, s{sW}, 2\ns_add_u32 s{sT3}, s{sT3}, s{sT2}\ns_lshl_b32 s{sT3}, s{sT3}, 13')
        for t in warm_wq(): P(t)
        P(f'v_lshlrev_b32 v{vWM}, 6, v2')
        VM.issue('warm', 4)
    stamp(P, 'pre_dma')
    def blk_code():
        if OPT.get('codepf', '1') == '1':
            P('s_getpc_b64 s[44:45]')
            P.label('L_pc')
            P(f's_lshr_b32 s46, s2, 3\ns_lshl_b32 s46, s46, 12\ns_add_u32 s46, s46, s{sW1K}')
            P(f's_min_u32 s46, s46, {KEND}-L_pc-1024')
            P(f'v_lshlrev_b32 v16, 4, v2\nv_add_u32 v16, s46, v16\nv_mov_b32 v17, s45\nv_add_co_u32 v16, vcc, s44, v16\ns_nop 1\nv_addc_co_u32 v17, vcc, 0, v17, vcc')
            P('global_load_dwordx4 v[20:23], v[16:17], off')
            VM.issue('warm', 1)
    def blk_ktouch():
        if OPT.get('ktouch', '1') == '1':
            P(f's_mov_b32 m0, {DUMMY}\ns_mov_b32 s{sT3}, 0\nbuffer_load_dwordx4 v{vDK}, s[{SRD_K}:{SRD_K+3}], s{sT3} offen nt lds')
            VM.issue('warm', 1)
    def blk_w0():
        for t in dmaWh(0): P(t)
        VM.issue('W0', 7)
    def blk_x():
        P(f'v_lshrrev_b32 v5, 3, v2\nv_and_b32 v6, 7, v2\ns_lshl_b32 s{sT0}, s{sB}, 2\nv_add_u32 v7, s{sT0}, v4\nv_xor_b32 v6, v6, v7\nv_lshlrev_b32 v6, 4, v6')
        P(f'v_mul_u32_u24 v5, 896, v5\nv_add_u32 v5, v5, v6\ns_mul_i32 s{sT0}, s{sW}, {8*896}\nv_add_u32 v5, s{sT0}, v5')
        P(f's_lshl_b32 s{sT1}, s{sB}, 10\ns_mul_i32 s{sT2}, s{sA}, 14336\ns_sub_u32 s{sT2}, 114688, s{sT2}')
        if XSPLIT:
            def piece_block():
                P(f's_add_u32 s47, s45, s{sW1K}')
                for j in range(4):
                    P(f's_add_u32 m0, s47, {j*4096}')
                    P(f's_add_u32 s{sOFF}, s46, {j*32*896}')
                    P(f'buffer_load_dwordx4 v5, s[{SRD_X}:{SRD_X+3}], s{sOFF} offen {NTX} lds')
                P(f's_add_u32 s47, s45, s{sT1}\ns_add_u32 m0, s47, 16384')
                P(f's_add_u32 s{sOFF}, s{sT2}, s46')
                P(f'buffer_load_dwordx4 v5, s[{SRD_X}:{SRD_X+3}], s{sOFF} offen {NTX} lds')
            P(f's_lshr_b32 s44, s2, 3\ns_and_b32 s44, s44, 3')
            P(f's_mul_i32 s45, s44, {XS}\ns_lshl_b32 s46, s44, 7')
            for i in range(4):
                piece_block()
                if i < 3: P(f's_add_u32 s45, s45, {XS}\ns_add_u32 s46, s46, 128\ns_cmp_eq_u32 s46, 512\ns_cselect_b32 s45, 0, s45\ns_cselect_b32 s46, 0, s46')
            VM.issue('x1', 20)
            P(f's_cmp_eq_u32 s44, 3\ns_cselect_b32 s44, 0, s44\ns_add_u32 s44, s44, 4\ns_mul_i32 s61, s44, {XS}\ns_lshl_b32 s62, s44, 7')
            P(f's_mov_b32 s63, s{sT2}\ns_mov_b32 s43, s{sT1}\nv_mov_b32 v18, v5')
            X2 = []
            for i in range(3):
                X2.append(f's_add_u32 s47, s61, s{sW1K}')
                for j in range(4):
                    X2 += [f's_add_u32 m0, s47, {j*4096}', f's_add_u32 s{sOFF}, s62, {j*32*896}', f'buffer_load_dwordx4 v18, s[{SRD_X}:{SRD_X+3}], s{sOFF} offen {NTX} lds']
                X2 += [f's_add_u32 s47, s61, s43', 's_add_u32 m0, s47, 16384', f's_add_u32 s{sOFF}, s63, s62', f'buffer_load_dwordx4 v18, s[{SRD_X}:{SRD_X+3}], s{sOFF} offen {NTX} lds']
                if i < 2: X2 += [f's_add_u32 s61, s61, {XS}', 's_add_u32 s62, s62, 128', 's_cmp_eq_u32 s62, 896\ns_cselect_b32 s61, ' + str(4*XS) + ', s61\ns_cselect_b32 s62, 512, s62']
            X2L.extend(X2)
            if not XDEFER:
                for t in X2: P(t)
                VM.issue('x2', 15)
        elif OPT.get('xrot', '1') == '1':
            P(f's_lshr_b32 s44, s2, 3\ns_and_b32 s44, s44, 3\ns_lshl_b32 s44, s44, 1')
            P(f's_mul_i32 s45, s44, {XS}\ns_lshl_b32 s46, s44, 7')
            for i in range(7):
                P(f's_add_u32 s47, s45, s{sW1K}')
                for j in range(4):
                    P(f's_add_u32 m0, s47, {j*4096}')
                    P(f's_add_u32 s{sOFF}, s46, {j*32*896}')
                    P(f'buffer_load_dwordx4 v5, s[{SRD_X}:{SRD_X+3}], s{sOFF} offen {NTX} lds')
                if XNODUP: P(f's_cmp_lg_u32 s{sA}, 0\ns_cbranch_scc1 L_xskip{i}')
                P(f's_add_u32 s47, s45, s{sT1}\ns_add_u32 m0, s47, 16384')
                P(f's_add_u32 s{sOFF}, s{sT2}, s46')
                P(f'buffer_load_dwordx4 v5, s[{SRD_X}:{SRD_X+3}], s{sOFF} offen {NTX} lds')
                if XNODUP: P.label(f'L_xskip{i}')
                if i < 6:
                    P(f's_add_u32 s45, s45, {XS}\ns_add_u32 s46, s46, 128\ns_cmp_eq_u32 s46, 896\ns_cselect_b32 s45, 0, s45\ns_cselect_b32 s46, 0, s46')
        else:
            for cb7 in range(7):
                for j in range(4):
                    P(f's_add_u32 m0, s{sW1K}, {cb7*XS + j*4096}')
                    P(f's_mov_b32 s{sOFF}, {j*32*896 + cb7*128}')
                    P(f'buffer_load_dwordx4 v5, s[{SRD_X}:{SRD_X+3}], s{sOFF} offen {NTX} lds')
                P(f's_add_u32 m0, s{sT1}, {cb7*XS + 16384}')
                P(f's_add_u32 s{sOFF}, s{sT2}, {cb7*128}')
                P(f'buffer_load_dwordx4 v5, s[{SRD_X}:{SRD_X+3}], s{sOFF} offen {NTX} lds')
        if not XSPLIT: VM.issue('x', 35)
    def blk_wwarm():
        P(f's_lshl_b32 s44, s{sJ}, 2\ns_add_u32 s44, s44, s{sW}\ns_min_u32 s44, s44, 27')
        P(f's_sub_u32 s44, s44, s{sW}\ns_lshl_b32 s44, s44, 16')
        P(f's_mov_b32 m0, {DUMMY}')
        for h in (1, 2, 3):
            g_, p = h >> 1, h & 1
            P(f's_add_u32 s45, s44, {p*224*8192 + (g_ >> 2)*512 + (g_ & 3)*128}')
            P(f'buffer_load_dwordx4 v{vDW}, s[{SRD_WQ}:{SRD_WQ+3}], s45 offen {NTW} lds')
        VM.issue('warm', 3)
    for nm in OPT.get('order', 'wxv' if OPT.get('codefirst', '1') == '1' else 'wxcv'):
        {'c': blk_code, 'k': blk_ktouch, 'w': blk_w0, 'x': blk_x, 'v': blk_wwarm}[nm]()
    stamp(P, 'x_issued')
    P(f'v_lshrrev_b32 v6, 1, v3\nv_xor_b32 v6, v6, v4\nv_lshlrev_b32 v6, 4, v6\nv_lshlrev_b32 v7, 7, v3\nv_add_u32 v6, v6, v7')
    P(f's_lshl_b32 s{sT0}, s{sW}, 12\nv_add_u32 v8, s{sT0}, v6\nv_xor_b32 v9, 64, v8')
    P(f'v_add_u32 v10, 16384, v6\nv_xor_b32 v11, 64, v10')
    for r in (8, 9, 10, 11): P(f'v_add_u32 v{r+4}, {3*XS}, v{r}')
    for u in range(4): P(f'v_add_u32 v{vW2[u]}, {WS0}, v{vW[u]}')
    P(f's_waitcnt vmcnt({VM.need(["x", "x1", "W0"])})\ns_barrier')
    stamp(P, 'x_landed')
    for ks in range(8 if XSPLIT else 14):
        cb7 = ks >> 1; hi = 4 if cb7 >= 3 else 0; base = (cb7 - (3 if hi else 0)) * XS
        for qt in range(2):
            P(f'ds_read_b128 a[{xa(qt,ks)}:{xa(qt,ks)+3}], v{8+(ks&1)+hi} offset:{base + qt*2048}')
        P(f'ds_read_b128 a[{x9a(ks)}:{x9a(ks)+3}], v{10+(ks&1)+hi} offset:{base}')
        if ks % 4 == 3: P('s_waitcnt lgkmcnt(3)')
    P('s_waitcnt lgkmcnt(0)\ns_barrier')
    if XSPLIT and XDEFER == 1:
        for t in X2L: P(t)
        VM.issue('x2', 15)
    EARLY = OPT.get('early', '1') == '1'
    if not EARLY:
        for h in (1, 2):
            for t in dmaWh(h): P(t)
            VM.issue(f'W{h}', 7)
        P(f's_mov_b32 s{sKV}, 16384')
        for t in dmaKV('V', sKV, 3): P(t)
        VM.issue('V0', 4)
    stamp(P, 'first_data')
    for h in range(16):
        g, p = h >> 1, h & 1
        A = vACC[g & 1]; A9 = vACC9[g & 1]
        items = []; entry = []
        for ksl in range(7):
            ks = 7 * p + ksl
            for up in range(4):
                k = len(items)
                kk = ksl * 4 + up
                regs = PENTRY[kk] if (h >= (4 if XSPLIT else E0) and kk < NPE) else None
                f = w_frag(h, ksl, up, regs)
                if regs is not None: entry.append(f)
                xf = []
                if XSPLIT and h == 1 and ks >= 8 and up == 0:
                    cb7 = ks >> 1; base = (cb7 - 3) * XS
                    xf = [Frag('b128', 12 + (ks & 1), base + qt * 2048, regs=xa(qt, ks), acc=True) for qt in range(2)]
                    xf.append(Frag('b128', 14 + (ks & 1), base, regs=x9a(ks), acc=True))
                def mf(f=f, ks=ks, up=up):
                    r = f.regs; o = []
                    for qt in range(2):
                        t = A + (up * 2 + qt) * 4
                        c = '0' if ks == 0 else f'v[{t}:{t+3}]'
                        o.append(f'{MF} v[{t}:{t+3}], {AF}[{r}:{r+3}], a[{xa(qt,ks)}:{xa(qt,ks)+3}], {c}')
                    if up == 0:
                        c = '0' if ks == 0 else f'v[{A9}:{A9+3}]'
                        o.append(f'{MF} v[{A9}:{A9+3}], {AF}[{r}:{r+3}], a[{x9a(ks)}:{x9a(ks)+3}], {c}')
                    return o
                items.append(Item(xf + [f], mf, 3 if up == 0 else 2))
        st, NM = mstarts(items)
        tasks = []
        L = []; tags = []
        if XSPLIT and h == 0:
            L = dmaWh(1); tags = [('W1', 7)]
            if XDEFER == 2: L = X2L + L; tags = [('x2', 15), ('W1', 7)]
        elif XSPLIT and h == 1: L = dmaWh(2) + dmaWh(4); tags = [('W2', 7), ('W4', 7)]
        elif XSPLIT and h == 2:
            L = dmaWh(3) + dmaWh(5) + [f's_mov_b32 s{sKV}, 16384'] + dmaKV('V', sKV, 3); tags = [('W3', 7), ('W5', 7), ('V0', 4)]
        elif h == 0 and EARLY:
            L = dmaWh(1) + dmaWh(2) + dmaWh(3) + [f's_mov_b32 s{sKV}, 16384'] + dmaKV('V', sKV, 3)
            tags = [('W1', 7), ('W2', 7), ('W3', 7), ('V0', 4)]
        elif h + 3 < 16: L = dmaWh(h + 3); tags = [(f'W{h+3}', 7)]
        elif h == 13: L = [f's_mov_b32 s{sKV}, 0'] + dmaKV('K', sKV, 0); tags = [('K0', 4)]
        elif h == 14:
            L = [f's_mov_b32 s{sKV}, 16384'] + dmaKV('K', sKV, 1) + [f's_mov_b32 s{sKV}, {2*16384}'] + dmaKV('K', sKV, 2); tags = [('K1', 4), ('K2', 4)]
        elif h == 15:
            L = [f's_mov_b32 s{sKV}, {2*16384}'] + dmaKV('V', sKV, 0) + [f's_mov_b32 s{sKV}, {3*16384}'] + dmaKV('K', sKV, 3); tags = [('V1', 4), ('K3', 4)]
        PF = OPT.get('pf', '')
        if PF:
            seq = []
            for tk in PF.split(','):
                which, tile = tk[0], int(tk[1:])
                seq += [(which, tile, k) for k in range(4)]
            per = int(OPT.get('pfper', 2)); h0 = int(OPT.get('pfh0', 1))
            mine = seq[(h - h0) * per:(h - h0 + 1) * per] if h >= h0 else []
            for which, tile, k in mine:
                so = tile * 16384 + (16384 if which == 'V' else 0) + k * 1024
                sr = SRD_K if which == 'K' else SRD_V
                L = L + [f's_add_u32 s{sT3}, s{sW4K}, {so}', f's_mov_b32 m0, {DUMMY}',
                         f'buffer_load_dwordx4 v{vWM}, s[{sr}:{sr+3}], s{sT3} offen {OPT.get("pfpol", "").replace("none", "")} lds']
            if mine: tags = tags + [('warm', len(mine))]
        if OPT.get('qnodma'): L = []
        ch = chain(L, sepfn=sepb)
        if XSPLIT and h == 0 and XDEFER == 2:
            tasks += spread(ch, 0, NM - 20)
        elif XSPLIT and h in (0, 1, 2):
            tasks += spread(ch[:15], 0, 20) + (spread(ch[15:], 24, NM - 8) if len(ch) > 15 else [])
        else:
            tasks += spread(ch, 0 if h == 0 else 1, NM - 12)
        for tg, n_ in tags: VM.issue(tg, n_)
        if h == 1 and not XSPLIT:
            tasks += [Task(f'v_add_u32 v{vW2[u]}, {2*HS}, v{vW[u]}', 4, 30) for u in range(4)]
        if h == 3 and XSPLIT:
            for u in range(4): P(f'v_add_u32 v{vW2[u]}, {2*HS}, v{vW[u]}')
        if g >= 1 and not OPT.get('qnoconv'):
            cv = conv_tasks(g - 1, NM)
            half = len(cv) * 0
            nblk = 12
            blk = 16
            part = cv[:2 * blk] if p == 0 else cv[2 * blk:]
            for k, t in enumerate(part):
                t.ready = 2; t.due = 6 + (NM - 14) * k // len(part)
            tasks += part
        exitf = []
        if (3 if XSPLIT else E0 - 1) <= h < 15:
            exitf = [w_frag(h + 1, k // 4, k % 4, PENTRY[k]) for k in range(NPE)]
        seg = OPT.get('seg') == f'q{h}'
        if seg:
            stamp(P, 'seg0'); P('s_mov_b32 s47, 50'); P.label('L_seg'); i0 = len(P.lines)
        lgq, _, _ = schedule(P, items, tasks, entry=entry, exitf=exitf, stats=stats, lead=LEADP, urgent=URGP, burst=(0 if entry else 5), age=AGEP, xstep=2)
        if seg:
            drop = tuple(x for x in OPT.get('segdrop', '').split(',') if x)
            body = [l for l in P.lines[i0:] if not (drop and l.startswith(drop))]
            del P.lines[i0:]; P.lines.extend(body)
            P('s_waitcnt vmcnt(9) lgkmcnt(10)\ns_barrier\ns_sub_u32 s47, s47, 1\ns_cmp_lg_u32 s47, 0\ns_cbranch_scc1 L_seg')
            stamp(P, 'seg1'); stamp(P, 'out_done'); stamp_flush(P); P('s_endpgm')
            return True
        need = [f'W{h+2}'] if h + 2 < 16 else []
        if h == 0: need = ['W1', 'W2'] if E0 == 2 else ['W1']
        if h == 1 and E0 == 3 and not XSPLIT: need = ['W2', 'W3']
        if XSPLIT and h < 3: need = [['W1', 'x2'], ['W2'], ['W3', 'W4']][h]
        if h == 15: need = ['K0', 'K1']
        n_ = VM.need(need) if need else None
        w_ = []
        if n_ is not None and not NOWAITQ: w_.append(f'vmcnt({n_})')
        w_.append(f'lgkmcnt({final_lgkm(lgq, exitf)})')
        P('s_waitcnt ' + ' '.join(w_) + '\ns_barrier')
        stamp(P, f'half{h}') if (PROF and (h in (1, 7, 12, 15) or PROF != '1')) else None
    for t in dmaKV('V', sKV, 1): P(t)
    VM.issue('V2', 4)
    P('s_nop 7')
    for t in conv_tasks(7): P(t)
    P('s_waitcnt lgkmcnt(0)\ns_barrier')

LEADP = int(OPT.get('leadp', 16)); URGP = int(OPT.get('urgp', 12)); AGEP = int(OPT.get('agep', 11)); AGE = int(OPT.get('age', 8))

def Sr(slot, qt): return slot + qt * 4
def Oa(cb, up, qt): return ((cb * 4 + up) * 4 + qt) * 4
def O9r(cb, q9): return vO9 + (cb * 2 + q9) * 4

def sm_tasks(src, dst2, l, ready, due, after=(), prio=0):
    ex = [Task(f'v_exp_f32 v{src+r}, v{src+r}', ready, due, prio=prio + r) for r in range(4)]
    ad = [Task(f'v_add_f32 v{l}, v{l}, v{src+r}', ready, due, gdeps=[ex[r]], prio=prio + 4 + r) for r in range(4)]
    c0 = Task(f'v_cvt_pk_bf16_f32 v{dst2}, v{src}, v{src+1}', ready, due, deps=[ad[0], ad[1]] + list(after), gdeps=[ex[0], ex[1]], prio=prio + 8)
    c1 = Task(f'v_cvt_pk_bf16_f32 v{dst2+1}, v{src+2}, v{src+3}', ready, due, deps=[ad[1], ad[2], ad[3], c0] + list(after), gdeps=[ex[2], ex[3]], prio=prio + 9)
    return ex + ad + [c0, c1], [c0, c1]

KENTRY = [POOL[0], POOL[1], POOL[2]]
def k_frag(kslot, kt, sp, regs=None, pool=None):
    return Frag('b128', vK[sp & 1], KB + kslot * 16384 + (sp >> 1) * 4096 + kt * 2048, pool=pool, regs=regs)

def q9_frag(sp, regs=None, pool=None):
    return Frag('b128', vQ9[sp & 1], (sp >> 1) * 2048, pool=pool, regs=regs)

def phaseA_items(i, kt9, poolA, kslot=None, S0=None, noentry=False):
    if kslot is None: kslot = (i + 1) & 3
    if S0 is None: S0 = vX[(i + 1) & 1]
    items = []
    cnt = 0
    entry = []
    for kt in range(2):
        S = S0 if kt == 0 else vY
        for sp in range(8):
            regs = KENTRY[cnt] if (cnt < len(KENTRY) and not noentry) else None
            fk = k_frag(kslot, kt, sp, regs=regs, pool=poolA)
            if regs is not None: entry.append(fk)
            cnt += 1
            def mf(fk=fk, S=S, sp=sp):
                r = fk.regs; o = []
                for qt in range(4):
                    t = Sr(S, qt); c = '0' if sp == 0 else f'v[{t}:{t+3}]'
                    o.append(f'{MF} v[{t}:{t+3}], v[{r}:{r+3}], v[{Qr(qt,sp)}:{Qr(qt,sp)+3}], {c}')
                return o
            items.append(Item([fk], mf, 4, tag=('qk', kt, sp)))
            if kt == kt9:
                f9 = q9_frag(sp, regs=(POOL[3] if (kt9 == 0 and sp == 0 and not noentry) else None), pool=poolA)
                if f9.regs is not None: entry.append(f9)
                def mf9(fk=fk, f9=f9, sp=sp):
                    c = '0' if sp == 0 else f'v[{vS9}:{vS9+3}]'
                    return [f'{MF} v[{vS9}:{vS9+3}], v[{fk.regs}:{fk.regs+3}], v[{f9.regs}:{f9.regs+3}], {c}']
                items.append(Item([f9], mf9, 1, tag=('qk9', sp), hold=[fk]))
    return items, entry

def exit_frags(i, kt9):
    nk = (i + 2) & 3
    L = [k_frag(nk, 0, 0, regs=KENTRY[0])]
    if kt9 == 0: L.append(q9_frag(0, regs=POOL[3]))
    L += [k_frag(nk, 0, sp, regs=KENTRY[sp]) for sp in (1, 2)]
    return L

def phaseB_items(i, zero=False):
    vslot = (i + 3) & 3
    Pc = vX[i & 1]
    buf = i & 1
    items = []
    p9 = [Frag('b128', vP9r, buf * 2048 + q9 * 1024, regs=vP9f + 4 * q9) for q9 in range(2)]
    for up in (1, 0, 2, 3):
        for cb in range(4):
            imm = vslot * 16384 + cb * 4096
            fv = Frag('tr', vV[up], imm, pool=POOL, imm2=imm + 2048)
            fr = [fv]
            if up == 0 and cb == 0: fr = p9 + [fv]
            def mf(fv=fv, up=up, cb=cb):
                r = fv.regs; o = []
                for qt in range(4):
                    a = Oa(cb, up, qt); c = '0' if zero else f'a[{a}:{a+3}]'
                    o.append(f'{MF} a[{a}:{a+3}], v[{r}:{r+3}], v[{Sr(Pc,qt)}:{Sr(Pc,qt)+3}], {c}')
                if up == 0:
                    for q9 in range(2):
                        t = O9r(cb, q9); c = '0' if zero else f'v[{t}:{t+3}]'
                        o.insert(2 + 2 * q9 - (0), f'{MF} v[{t}:{t+3}], v[{r}:{r+3}], v[{vP9f+4*q9}:{vP9f+4*q9+3}], {c}')
                return o
            items.append(Item(fr, mf, 6 if up == 0 else 4, tag=('pv', up, cb), hold=(p9 if (up == 0 and cb > 0) else [])))
    return items

def softmax_tasks(i, kt9, k1start, NM, a_end, skip1=False):
    S0 = vX[(i + 1) & 1]
    T = []
    r0 = k1start + 2
    r1 = a_end + 2
    due = NM - 3
    last0 = []
    for qt in range(4):
        t, l = sm_tasks(Sr(S0, qt), Sr(S0, qt), vL[qt], r0 + qt, due - 40, prio=qt * 10); T += t; last0.append(l)
    t9, l9 = sm_tasks(vS9, vS9, vL9, r0 if kt9 == 0 else r1, due - 12, prio=45)
    T += t9
    T.append(Task(f'ds_write_b64 v{vP9w}, v[{vS9}:{vS9+1}] offset:{((i+1)&1)*2048}', r0, due - 8, deps=l9, prio=56))
    if skip1: return T
    for qt in range(4):
        t, l = sm_tasks(Sr(vY, qt), Sr(S0, qt) + 2, vL[qt], r1 + qt, due, after=last0[qt], prio=60 + qt * 10); T += t
    return T

def order_entry(entry):
    return entry

def gen_iter(P, i, kt9, stats, dma=True, zero=False):
    if OPT.get('nodma'): dma = False
    poolA = POOL + [vP9f, vP9f + 4]
    A, entry = phaseA_items(i, kt9, poolA)
    B = phaseB_items(i, zero)
    items = A + B
    st, NM = mstarts(items)
    a_end = st[len(A)]
    k1 = st[[k for k, it in enumerate(A) if it.tag == ('qk', 1, 0)][0]]
    tasks = softmax_tasks(i, kt9, k1, NM, a_end)
    if OPT.get('nosm'): tasks = []
    late = []
    if zero and SM1LATE:
        for qt in range(4):
            t, l = sm_tasks(Sr(vY, qt), Sr(vX[0], qt) + 2, vL[qt], 0, k1 - 4, prio=qt * 10); late += t
        for k, t in enumerate(sorted(late, key=lambda t: t.prio)): t.due = 2 + (k1 - 8) * k // len(late)
        tasks += late
    if dma:
        L = dmaKV('K', sKV, i & 3) + dmaKV('V', sKV, (i + 3 + 3) & 3) + [f's_add_u32 s{sKV}, s{sKV}, {0 if OPT.get("l2dma") else 16384}']
        ch = chain(L, ready=0, due=NM - 4, sepfn=lambda t: t.startswith('buffer'))
        sp = int(OPT.get('dmasp', 16)); d0 = int(OPT.get('dma0', 2))
        pos = [d0 + j * sp for j in range(8)]
        if OPT.get('dmapos'): pos = [int(x) for x in OPT['dmapos'].split(',')]
        for k, t in enumerate(ch):
            j = min(k // 2, 7)
            t.ready = pos[j]; t.due = min(pos[j] + 6, NM - 4)
        tasks += ch
        if WOWARM:
            wm = chain([f's_add_u32 s{sWO}, s{sWO}, 1024', f's_mov_b32 m0, {DUMMY}', f'buffer_load_dwordx4 v{vLIN}, s[{SRD_WO}:{SRD_WO+3}], s{sWO} offen lds'],
                       ready=NM - 14, due=NM - 6, sepfn=lambda t: t.startswith('buffer'), first_deps=[ch[-2]])
            tasks += wm
    exitf = exit_frags(i, kt9)
    lgq, _, _ = schedule(P, items, tasks, entry=entry, exitf=exitf, stats=stats, lead=LEAD, urgent=URG, age=AGE)
    assert all(t.at < k1 - 1 for t in late), [(t.text, t.at, k1) for t in late if t.at >= k1 - 1]
    ne = final_lgkm(lgq, exitf)
    if OPT.get('nowaita'): P(f's_waitcnt lgkmcnt({ne})')
    else: P(f's_waitcnt vmcnt({((13 if zero else 14) if WOWARM else 12) + KRELAX}) lgkmcnt({ne})')
    if not OPT.get('nobar'): P('s_barrier')

LEAD = int(OPT.get('lead', 16)); URG = int(OPT.get('urg', 10))
SM1LATE = OPT.get('sm1late', '1') == '1'
KRELAX = int(OPT.get('krelax', 2))
WOWARM = OPT.get('wowarm', '1') == '1'
sWO = 42; vLIN = 253
def attn_prologue(P, kt9, stats):
    i = -1
    poolA = POOL + [vP9f, vP9f + 4]
    A, entry = phaseA_items(i, kt9, poolA)
    st, NM = mstarts(A)
    k1 = st[[k for k, it in enumerate(A) if it.tag == ('qk', 1, 0)][0]]
    tasks = softmax_tasks(i, kt9, k1, NM + 200, NM + 20, skip1=SM1LATE)
    lgq, _, _ = schedule(P, A, tasks, entry=[], exitf=[], stats=stats, lead=LEAD, urgent=URG, burst=3)
    ex = exit_frags(i, kt9)
    for f in ex:
        for t in f.instrs(): P(t)
    P(f's_waitcnt vmcnt({12 + KRELAX}) lgkmcnt({len(ex)})')
    P('s_barrier')

def attention(P, stats):
    P.lines.append('; ---- attention: prologue QK(0), then per iteration QK(i+1) | PV(i) with softmax(i+1) in the MFMA gaps (two code versions by wave parity)')
    P(f's_mov_b32 s{sKV}, {4*16384}')
    for qt in range(4): P(f'v_mov_b32 v{vL[qt]}, 0')
    P(f'v_mov_b32 v{vL9}, 0')
    if WOWARM:
        WO0 = int(OPT.get('wo0', 12))
        P(f'v_mbcnt_lo_u32_b32 v{vLIN}, -1, 0\nv_mbcnt_hi_u32_b32 v{vLIN}, -1, v{vLIN}\nv_lshlrev_b32 v{vLIN}, 4, v{vLIN}')
        P(f's_mul_i32 s{sWO}, s{sJ}, 57344\ns_mul_i32 s{sT0}, s{sW}, 14336\ns_add_u32 s{sWO}, s{sWO}, s{sT0}')
        P(f's_sub_u32 s{sWO}, s{sWO}, 1024')
    P(f's_cmp_eq_u32 s{sB}, 1\ns_cbranch_scc1 L_attn1')
    for kt9 in range(2):
        if kt9 == 1: P.label('L_attn1')
        attn_prologue(P, kt9, stats)
        if kt9 == 0: stamp(P, 'attn_prologue_done')
        P(f's_mov_b32 s{sCNT}, 8')
        gen_iter(P, 0, kt9, stats, zero=True)
        P(f's_branch L_body1_{kt9}')
        P('.p2align 3')
        P.label(f'L_loop{kt9}')
        if OPT.get('codepf2', '1') == '1':
            P(f's_cmp_lg_u32 s{sCNT}, {OPT.get("pf2at", 2)}\ns_cbranch_scc1 L_nopf{kt9}')
            P('s_getpc_b64 s[44:45]')
            P.label(f'L_pc2_{kt9}')
            P(f's_sub_u32 s44, s44, L_pc2_{kt9}-L_pc\ns_subb_u32 s45, s45, 0')
            P(f's_lshr_b32 s46, s2, 3\ns_lshl_b32 s46, s46, 12\ns_add_u32 s46, s46, s{sW1K}\ns_min_u32 s46, s46, {KEND}-L_pc-1024')
            P(f'v_add_u32 v254, s46, v{vLIN}\nv_mov_b32 v255, s45\nv_add_co_u32 v254, vcc, s44, v254\ns_nop 1\nv_addc_co_u32 v255, vcc, 0, v255, vcc')
            P(f's_mov_b32 m0, {DUMMY}\ns_nop 0\nglobal_load_lds_dwordx4 v[254:255], off')
            P.label(f'L_nopf{kt9}')
        for i in range(4):
            if i == 1: P.label(f'L_body1_{kt9}')
            if i == 3:
                P(f's_sub_u32 s{sCNT}, s{sCNT}, 1\ns_cmp_eq_u32 s{sCNT}, 0\ns_cbranch_scc1 L_tail')
            gen_iter(P, i, kt9, stats)
        P(f's_branch L_loop{kt9}')

vA = [236, 237, 242, 243]
vDO = 253; vDOc = 252; vST = 254; vST9 = 255
sOJ = sWJ
LO_F = 0x30800000
HI_F = 0x53800000
def OP(qt, s): return vQ + (qt * 8 + s) * 4

def lane_recompute(P, lane, n, g):
    P(f'v_mbcnt_lo_u32_b32 v{lane}, -1, 0\nv_mbcnt_hi_u32_b32 v{lane}, -1, v{lane}')
    P(f'v_and_b32 v{n}, 15, v{lane}\nv_lshrrev_b32 v{g}, 4, v{lane}')

def reduce4(P, r, t, op='v_add_f32'):
    P(f'v_mov_b32 v{t}, v{r}\ns_nop 1\nv_permlane32_swap_b32 v{t}, v{r}\ns_nop 1\n{op} v{r}, v{r}, v{t}')
    P(f'v_mov_b32 v{t}, v{r}\ns_nop 1\nv_permlane16_swap_b32 v{t}, v{r}\ns_nop 1\n{op} v{r}, v{r}, v{t}')

NTO = OPT.get('nto', '').replace('none', '')

vR9 = [206, 207]
def tail_pre(P):
    lane, n, g = 200, 201, 202
    P.lines.append('; ---- loop exit: run-time guard on the row sums (fallback: L_slow), tile-9 row sums, constants of the out projection')
    P.label('L_tail')
    P('s_waitcnt lgkmcnt(0)')
    stamp(P, 'loop_done')
    lane_recompute(P, lane, n, g)
    P(f's_mov_b32 s{sT0}, {LO_F}\ns_mov_b32 s{sT1}, {HI_F}\ns_mov_b64 s[44:45], -1')
    for r in vL + [vL9]:
        P(f'v_cmp_le_f32 s[46:47], s{sT0}, v{r}\nv_cmp_ge_f32 vcc, s{sT1}, v{r}\ns_nop 1\ns_and_b64 s[44:45], s[44:45], s[46:47]\ns_and_b64 s[44:45], s[44:45], vcc')
    P(f's_cmp_eq_u64 s[44:45], -1\ns_cselect_b32 s{sT2}, 0, 1')
    if OPT.get('forceslow'): P(f's_mov_b32 s{sT2}, 1')
    reduce4(P, vL9, 203)
    P(f'v_lshlrev_b32 v203, 2, v{lane}\ns_lshl_b32 s{sT0}, s{sW}, 8\ns_add_u32 s{sT0}, s{sT0}, {SCR}\nv_add_u32 v203, s{sT0}, v203')
    P(f'v_mov_b32 v204, s{sT2}\nds_write_b32 v203, v{vL9}\nds_write_b32 v203, v204 offset:1024')
    P(f'v_lshrrev_b32 v203, 3, v{lane}\nv_and_b32 v204, 7, v{lane}\nv_and_b32 v205, 6, v203\nv_xor_b32 v204, v204, v205\nv_lshlrev_b32 v204, 4, v204')
    P(f'v_mul_u32_u24 v203, 896, v203\nv_add_u32 v203, v203, v204\ns_mul_i32 s{sT0}, s{sW}, {8*896}\nv_add_u32 v{vDO}, s{sT0}, v203')
    for k in range(8): P(f's_mov_b32 s{sOJ[k]}, {k*32*896}')
    P(f's_mov_b32 s{sST1}, 0\ns_mov_b32 s{sST2}, 0')
    if FUSE:
        P('s_load_dwordx2 s[62:63], s[0:1], 88\ns_waitcnt lgkmcnt(0)')
        srd(P, S_DBG, 62, 63, 256)
    P('s_waitcnt vmcnt(0) lgkmcnt(0)\ns_barrier')
    P(f'v_lshlrev_b32 v203, 2, v{n}\nv_add_u32 v203, {SCR}, v203')
    for k in range(4): P(f'ds_read_b32 v{192+k}, v203 offset:{k*256}')
    for k in range(4): P(f'ds_read_b32 v{196+k}, v203 offset:{1024+k*256}')
    P('s_waitcnt lgkmcnt(0)')
    P('v_or_b32 v196, v196, v197\nv_or_b32 v198, v198, v199\nv_or_b32 v196, v196, v198\ns_nop 0\nv_readfirstlane_b32 s43, v196')
    P(f'v_add_f32 v{vR9[0]}, v192, v193\nv_add_f32 v{vR9[1]}, v194, v195')
    P(f's_cmp_eq_u32 s43, 0\ns_cbranch_scc1 L_fast_ok\ns_cmp_lg_u32 s{sSLOW}, 0\ns_cbranch_scc1 L_fast_ok\ns_branch L_slow')
    P.label('L_fast_ok')
    P(f'v_rcp_f32 v{vR9[0]}, v{vR9[0]}\nv_rcp_f32 v{vR9[1]}, v{vR9[1]}')
    reduce4_multi(P, vL, [192, 193, 194, 195])
    for qt in range(4): P(f'v_rcp_f32 v{vL[qt]}, v{vL[qt]}')
    for u in range(4): P(f'v_subrev_u32 v{vA[u]}, 65536, v{vV[u]}')
    P(f'v_lshlrev_b32 v203, 4, v{lane}\ns_lshl_b32 s{sT0}, s{sW}, 12\nv_add_u32 v{vST}, s{sT0}, v203')
    P(f'v_lshlrev_b32 v203, 3, v{lane}\ns_lshl_b32 s{sT0}, s{sW}, 9\ns_add_u32 s{sT1}, s{sT0}, 114688\nv_add_u32 v{vST9}, s{sT1}, v203')
    stamp(P, 'tail_pre')
    P(f's_add_u32 s{sT0}, s{sT0}, {Q9B}\nv_add_u32 v246, s{sT0}, v203\nv_add_u32 v247, {Q9B}, v203')
sSLOW = 49

def norm_chain(w, qts, order, temps):
    L = []
    k = 0
    for (cb, up) in order:
        for qt in qts:
            a = Oa(cb, up, qt); t = temps[k % len(temps)]; k += 1
            u = up ^ w
            d = OP(qt, 2 * cb + (u >> 1)) + (u & 1) * 2
            L.append([f'v_accvgpr_read_b32 v{t+r}, a{a+r}' for r in range(4)] + [f'v_mul_f32 v{t+r}, v{t+r}, v{vL[qt]}' for r in range(4)]
                     + [f'v_cvt_pk_bf16_f32 v{d}, v{t}, v{t+1}', f'v_cvt_pk_bf16_f32 v{d+1}, v{t+2}, v{t+3}'])
    return L

def o_frag(j, cb, v, up, regs=None):
    sl = j & 3
    a = vA[up] if sl < 2 else vV[up]
    imm = (sl & 1) * 32768 + cb * 8192 + v * 4096
    return Frag('tr', a, imm, pool=PPOOL, imm2=imm + 2048, regs=regs, acc=APOOL)

STF = OPT.get('stf', 'sc1').replace('none', '')
class B9Frag(Frag):
    def instrs(s):
        r = s.regs - 1000
        return [f'ds_read_b64 a[{r}:{r+1}], v247 offset:{s.imm}', f'ds_read_b64 a[{r+2}:{r+3}], v247 offset:{s.imm+512}']

sST1 = 44; sST2 = 45
def reduce4_multi(P, regs, temps, op='v_add_f32'):
    for swap in ('v_permlane32_swap_b32', 'v_permlane16_swap_b32'):
        for r, t in zip(regs, temps): P(f'v_mov_b32 v{t}, v{r}')
        for r, t in zip(regs, temps): P(f'{swap} v{t}, v{r}')
        for r, t in zip(regs, temps): P(f'{op} v{r}, v{r}, v{t}')

def dmaOh(j, rolled=False):
    cg, hp = j >> 1, j & 1
    base = (j & 3) * 32768
    L = [f'v_add_u32 v{vDOc}, {hp*256*896 + cg*128}, v{vDO}']
    for k in range(8):
        L.append(f's_add_u32 m0, s{sW1K}, {base + k*4096}')
        L.append(f'buffer_load_dwordx4 v{vDOc}, s[{SRD_WO}:{SRD_WO+3}], s{sOJ[k]} offen {NTO} lds')
    return L

def store_lists(par):
    A = vACC[par]; A9 = vACC9[par]
    cv = []; st = []
    for qt in range(2):
        for vp in range(2):
            t = A + ((2 * vp) * 2 + qt) * 4; u = A + ((2 * vp + 1) * 2 + qt) * 4
            cv.append([f'v_cvt_pk_bf16_f32 v{t}, v{t}, v{t+1}', f'v_cvt_pk_bf16_f32 v{t+1}, v{t+2}, v{t+3}',
                       f'v_cvt_pk_bf16_f32 v{t+2}, v{u}, v{u+1}', f'v_cvt_pk_bf16_f32 v{t+3}, v{u+2}, v{u+3}'])
            st.append(f'buffer_store_dwordx4 v[{t}:{t+3}], v{vST}, s[{SRD_WS}:{SRD_WS+3}], s{sST1} offen offset:{(qt*2+vp)*1024} {STF}'.strip())
    cv.append([f'v_cvt_pk_bf16_f32 v{A9}, v{A9}, v{A9+1}', f'v_cvt_pk_bf16_f32 v{A9+1}, v{A9+2}, v{A9+3}'])
    st.append(f'buffer_store_dwordx2 v[{A9}:{A9+1}], v{vST9}, s[{SRD_WS}:{SRD_WS+3}], s{sST2} offen {STF}'.strip())
    return cv, st

def out_half(P, j, stats, vm, extra_tasks=(), emit=True):
    if not emit: P = Prog()
    cg, hp = j >> 1, j & 1
    A = vACC[cg & 1]; A9 = vACC9[cg & 1]
    sepb = lambda t: t.startswith('buffer')
    items = []; entry = []
    has_entry = j != 0
    for cb in range(4):
        for v in range(2):
            for up in range(4):
                k = (cb * 2 + v) * 4 + up
                regs = PENTRY[k] if (has_entry and k < NPE) else None
                f = o_frag(j, cb, v, up, regs)
                if regs is not None: entry.append(f)
                b9f = hp * 8 + 2 * cb + v
                b9 = 16 * (b9f >> 1) + 4 * (b9f & 1)
                z = (hp == 0 and cb == 0 and v == 0)
                def mf(f=f, cb=cb, v=v, up=up, z=z):
                    r = f.regs; o = []
                    for qt in range(2):
                        t = A + (up * 2 + qt) * 4; c = '0' if z else f'v[{t}:{t+3}]'
                        b = OP(2 * hp + qt, 2 * cb + v)
                        o.append(f'{MF} v[{t}:{t+3}], {AF}[{r}:{r+3}], v[{b}:{b+3}], {c}')
                    return o
                items.append(Item([f], mf, 2))
                if up == 0:
                    fr9 = []
                    if cg == 0: fr9 = [B9Frag('b9', 247, (hp * 16 + 4 * cb + 2 * v) * 512, regs=1000 + b9)]
                    def mf9(f=f, z=z, b9=b9):
                        c = '0' if z else f'v[{A9}:{A9+3}]'
                        return [f'{MF} v[{A9}:{A9+3}], {AF}[{f.regs}:{f.regs+3}], a[{b9}:{b9+3}], {c}']
                    items.append(Item(fr9, mf9, 1, hold=[f]))
    st, NM = mstarts(items)
    tasks = list(extra_tasks)
    if j == 0:
        ch = chain(dmaOh(2), sepfn=sepb); spread(ch, 1, NM // 2 - 4)
        for t in ch: t.tag = 'O2'
        ch2 = chain(dmaOh(3), sepfn=sepb, first_deps=[ch[-1]]); spread(ch2, NM // 2, NM - 8)
        for t in ch2: t.tag = 'O3'
        tasks += ch + ch2
    elif not OPT.get('onodma'):
        ch = spread(chain(dmaOh(j + 3), sepfn=sepb), 1, NM - 10)
        for t in ch: t.tag = f'O{j+3}'
        tasks += ch
    if cg >= 1 and not OPT.get('nostore'):
        cvl, stl = store_lists((cg - 1) & 1)
        idx = (0, 1, 4) if hp == 0 else (2, 3)
        pos = [14 + (NM - 22) * q // len(idx) for q in range(len(idx))]
        for q, k in enumerate(idx):
            cv = chain(cvl[k], ready=3, due=pos[q] - 2)
            for z_, t in enumerate(cv): t.due = max(3, pos[q] - 2 * (len(cv) - z_) - 1)
            s_ = Task(stl[k], ready=pos[q], due=pos[q] + 3, gdeps=[cv[-1]]); s_.tag = 'S'
            tasks += cv + [s_]
        if hp == 1:
            tasks += [Task(f's_add_u32 s{sST1}, s{sST1}, 16384', ready=NM - 5, due=NM - 2, deps=[t for t in tasks if getattr(t, 'tag', '') == 'S']),
                      Task(f's_add_u32 s{sST2}, s{sST2}, 2048', ready=NM - 5, due=NM - 2, deps=[t for t in tasks if getattr(t, 'tag', '') == 'S'])]
    exitf = []
    kk = 0
    for cb in range(4):
        for v in range(2):
            for up in range(4):
                if kk < NPE: exitf.append(o_frag(j + 1, cb, v, up, PENTRY[kk]))
                kk += 1
    seg = emit and OPT.get('seg') == f'o{j}'
    log = []
    lgq, _, _ = schedule(P, items, tasks, entry=entry, exitf=exitf, stats=(stats if emit else None), lead=LEADP, urgent=URGP, burst=(0 if entry else 5), age=AGEP, vmlog=log, xstep=2)
    for tg in log: vm.issue(tg, 1)
    need = [f'O{j+2}']
    n_ = vm.need(need)
    w_ = []
    if not OPT.get('onowait'): w_.append(f'vmcnt({n_})')
    w_.append(f'lgkmcnt({final_lgkm(lgq, exitf)})')
    P('s_waitcnt ' + ' '.join(w_) + '\ns_barrier')
    return n_

def tail_and_out(P, stats):
    tail_pre(P)
    import copy
    for w in range(4):
        if w < 3: P(f's_cmp_lg_u32 s{sW}, {w}\ns_cbranch_scc1 L_tw{w+1}')
        vm = VMQ()
        B = phaseB_items(3)
        st, NM = mstarts(B)
        order = [(it.tag[2], it.tag[1]) for it in B]
        fin = {(it.tag[2], it.tag[1]): st[k] + it.nm - 1 for k, it in enumerate(B)}
        tasks = spread(chain(dmaOh(0) + dmaOh(1), sepfn=lambda t: t.startswith('buffer')), 1, NM - 8)
        vm.issue('O0', 8); vm.issue('O1', 8)
        T1 = [160, 164, 168, 172, 192, 196, 200 - 0]
        T1 = [160, 164, 168, 172, 192, 196]
        nc = norm_chain(w, (0, 1), order, T1)
        flat = []; prev = None
        for k, blk in enumerate(nc):
            cbup = order[k // 2]
            for t in blk:
                tk = Task(t, ready=fin[cbup] + 4, due=10**6 + len(flat), deps=([prev] if prev else [])); flat.append(tk); prev = tk
        o9 = []
        for cb in range(4):
            for q9 in range(2):
                t = O9r(cb, q9)
                o9 += [f'v_mul_f32 v{t+r}, v{t+r}, v{vR9[q9]}' for r in range(4)]
                o9 += [f'v_cvt_pk_bf16_f32 v{t}, v{t}, v{t+1}', f'v_cvt_pk_bf16_f32 v{t+1}, v{t+2}, v{t+3}', f'ds_write_b64 v246, v[{t}:{t+1}] offset:{(q9*16+4*cb)*512}']
        o9t = chain(o9, ready=fin[(3, 0)] + 4, due=10**5)
        schedule(P, B, tasks + o9t + flat, stats=stats, lead=LEAD, urgent=URG, burst=3, age=AGE)
        P(f's_waitcnt vmcnt({vm.need(["O0", "O1"])}) lgkmcnt(0)\ns_barrier')
        if w == 0: stamp(P, 'norm_done')
        nc = norm_chain(w, (2, 3), [(cb, up) for cb in range(4) for up in range(4)], [160, 164, 168, 172, 176, 180, 184, 188])
        flat = []; prev = None
        for blk in nc:
            for t in blk:
                tk = Task(t, ready=0, due=10**6 + len(flat), deps=([prev] if prev else [])); flat.append(tk); prev = tk
        out_half(P, 0, stats, vm, extra_tasks=flat)
        P('s_branch L_out1')
        if w < 3: P.label(f'L_tw{w+1}')
    P.lines.append('; ---- out projection: half-stages of wo (64 columns x 256 rows), partial sums -> d_ws')
    P.label('L_out1')
    if FUSE: P(f'v_mov_b32 v{vONE}, 1\nv_mov_b32 v{vZERO}, 0')
    out_half(P, 1, stats, vm)
    stamp(P, 'o1')
    P(f's_mov_b32 s{sCNT}, 3')
    P('.p2align 3')
    P.label('L_oloop')
    ns = []
    for j in range(2, 6):
        if j == 4 and FUSE: publish_stageA(P)
        ns.append(out_half(P, j, stats, vm))
    for t_ in (1, 2):
        ns2 = [out_half(P, j, stats, vm, emit=False) for j in range(2 + 4 * t_, 6 + 4 * t_)]
        assert all(a <= b for a, b in zip(ns, ns2)), (ns, ns2)
    P(f'v_add_u32 v{vDO}, 256, v{vDO}\ns_sub_u32 s{sCNT}, s{sCNT}, 1\ns_cmp_lg_u32 s{sCNT}, 0\ns_cbranch_scc1 L_oloop')
    stamp(P, 'o13')
    P('s_waitcnt lgkmcnt(0)\ns_nop 7')
    cvl, stl = store_lists(0)
    for c in cvl:
        for t in c: P(t)
    for t in stl: P(t)
    stamp(P, 'stores_issued')
    if FUSE: fused_reduce(P)
    else: P('s_waitcnt vmcnt(0)')


S_DBG = 4
vONE, vZERO = 248, 249
def publish_stageA(P):
    P(f's_cmp_lg_u32 s{sCNT}, 1\ns_cbranch_scc1 L_nopubA\ns_cmp_lg_u32 s{sW}, 0\ns_cbranch_scc1 L_nopubA')
    P(f's_mov_b64 exec, 1\nbuffer_store_byte v{vONE}, v{vZERO}, s[{S_DBG}:{S_DBG+3}], s{sPL} offen sc1\ns_mov_b64 exec, -1')
    P.label('L_nopubA')

def fused_reduce(P):
    S_CL, S_OUT = 8, 12
    sK, sCLU, sMASK, sI = 52, 53, 54, 55
    vLANE, vN, vG, vOB = 128, 133, 134, 135
    sPl = [72, 73, 74, 75, 76, 77, 78, 79] if not PROF else [40, 41, 42, 43, 44, 45, 33, 34]
    vI = [140, 141, 142, 143]; vO1 = [144, 145, 146, 147]; vO2 = [148, 149, 150, 151]
    cnt = [0]
    def poll(bit, lab_ok, lab_to):
        c = cnt[0]; cnt[0] += 1
        P(f's_mov_b32 s47, {SPIN}')
        P.label(f'L_fr_poll{c}')
        P(f'buffer_load_ubyte v132, v131, s[{S_DBG}:{S_DBG+3}], s46 offen sc1\ns_waitcnt vmcnt(0)')
        P(f'v_and_b32 v137, {bit}, v132\nv_cmp_ne_u32 vcc, 0, v137\ns_nop 1\ns_cmp_eq_u64 vcc, -1\ns_cbranch_scc1 {lab_ok}')
        P(f's_sleep 1\ns_sub_u32 s47, s47, 1\ns_cmp_lg_u32 s47, 0\ns_cbranch_scc1 L_fr_poll{c}')
        P(f's_branch {lab_to}')
    def job_addr(q, idx_expr, cg0, nmain, cgend, tag):
        P(idx_expr)
        P(f's_cmp_ge_u32 s{sI}, {nmain}\ns_cbranch_scc1 L_fr_t9_{tag}')
        P(f's_lshr_b32 s46, s{sI}, 1\ns_add_u32 s46, s46, {cg0}\ns_and_b32 s47, s{sI}, 1')
        P(f's_lshl_b32 s35, s46, 14\ns_lshl_b32 s36, s{sK}, 11\ns_add_u32 s35, s35, s36\ns_lshl_b32 s36, s47, 10\ns_add_u32 s35, s35, s36')
        P(f'v_lshlrev_b32 v{vI[q]}, 4, v{vLANE}\nv_add_u32 v{vI[q]}, s35, v{vI[q]}')
        P(f's_lshr_b32 s35, s{sK}, 1\ns_and_b32 s36, s{sK}, 1')
        P(f's_lshl_b32 s37, s35, 5\ns_lshl_b32 s36, s36, 4\ns_add_u32 s37, s37, s36\ns_add_u32 s37, s37, s63\ns_mul_i32 s37, s37, 896')
        P(f's_add_u32 s37, s37, s62\ns_lshl_b32 s46, s46, 6\ns_add_u32 s37, s37, s46')
        P(f's_lshl_b32 s47, s47, 1\ns_xor_b32 s47, s47, s35\ns_lshl_b32 s36, s47, 4\ns_add_u32 s36, s36, s37\ns_lshl_b32 s36, s36, 1')
        P(f'v_add_u32 v{vO1[q]}, s36, v{vOB}')
        P(f's_xor_b32 s47, s47, 1\ns_lshl_b32 s36, s47, 4\ns_add_u32 s36, s36, s37\ns_lshl_b32 s36, s36, 1')
        P(f'v_add_u32 v{vO2[q]}, s36, v{vOB}')
        P(f's_branch L_fr_j{tag}')
        P.label(f'L_fr_t9_{tag}')
        P(f's_sub_u32 s46, s{sI}, {nmain}\ns_lshl_b32 s46, s46, 2\ns_add_u32 s46, s46, {cg0}\nv_add_u32 v152, s46, v{vG}')
        P(f's_lshr_b32 s35, s{sK}, 1\ns_and_b32 s36, s{sK}, 1')
        P(f'v_lshlrev_b32 v153, 11, v152\ns_lshl_b32 s37, s35, 9\ns_lshl_b32 s47, s36, 8\ns_add_u32 s37, s37, s47\ns_add_u32 s37, s37, 114688')
        P(f'v_lshlrev_b32 v154, 4, v{vN}\nv_add_u32 v153, v153, v154\nv_add_u32 v153, s37, v153')
        P(f'v_lshlrev_b32 v154, 1, v{vN}\nv_and_b32 v154, 15, v154\nv_lshrrev_b32 v155, 3, v{vN}\ns_lshl_b32 s36, s36, 1\nv_add_u32 v155, s36, v155')
        P(f's_add_u32 s37, s63, 128\nv_add_u32 v154, s37, v154\nv_mul_u32_u24 v154, 896, v154')
        P(f'v_lshlrev_b32 v156, 6, v152\nv_lshlrev_b32 v155, 2, v155\nv_add_u32 v154, v154, v156\nv_add_u32 v154, v154, v155')
        P(f's_lshl_b32 s35, s35, 4\ns_add_u32 s35, s35, s62\nv_add_u32 v154, s35, v154\nv_lshlrev_b32 v154, 1, v154')
        P(f'v_cmp_gt_u32 vcc, {cgend}, v152\nv_mov_b32 v156, 0x7fff0000\ns_nop 0\nv_cndmask_b32 v{vO1[q]}, v156, v154, vcc\nv_cndmask_b32 v{vI[q]}, v156, v153, vcc')
        P(f'v_add_u32 v{vO2[q]}, 1792, v{vO1[q]}')
        P.label(f'L_fr_j{tag}')
    def loads(qs):
        for q in qs:
            for p in range(8):
                d = (q * 8 + p) * 4
                P(f'buffer_load_dwordx4 v[{d}:{d+3}], v{vI[q]}, s[{S_CL}:{S_CL+3}], s{sPl[p]} offen sc1')
    def sums(qs):
        n = len(qs) * 8
        for k, q in enumerate(qs):
            acc = 160
            for p in range(8):
                P(f's_waitcnt vmcnt({n - 1 - (k*8+p) + 2*k})')
                for dd in range(4):
                    src = (q * 8 + p) * 4 + dd
                    if DOT2:
                        c0 = '0' if p == 0 else f'v{acc+2*dd}'; c1 = '0' if p == 0 else f'v{acc+2*dd+1}'
                        P(f'v_dot2_f32_bf16 v{acc+2*dd}, v{src}, v168, {c0}\nv_dot2_f32_bf16 v{acc+2*dd+1}, v{src}, v169, {c1}')
                    elif p == 0:
                        P(f'v_lshlrev_b32 v{acc+2*dd}, 16, v{src}\nv_and_b32 v{acc+2*dd+1}, 0xffff0000, v{src}')
                    else:
                        P(f'v_lshlrev_b32 v170, 16, v{src}\nv_and_b32 v171, 0xffff0000, v{src}\nv_add_f32 v{acc+2*dd}, v{acc+2*dd}, v170\nv_add_f32 v{acc+2*dd+1}, v{acc+2*dd+1}, v171')
            o = 172 + 4 * (k & 1)
            for dd in range(4): P(f'v_cvt_pk_bf16_f32 v{o+dd}, v{acc+2*dd}, v{acc+2*dd+1}')
            P(f'buffer_store_dwordx2 v[{o}:{o+1}], v{vO1[q]}, s[{S_OUT}:{S_OUT+3}], 0 offen')
            P(f'buffer_store_dwordx2 v[{o+2}:{o+3}], v{vO2[q]}, s[{S_OUT}:{S_OUT+3}], 0 offen')
    def bcast_write(sreg, o=0): P(f'v_mov_b32 v129, s{sreg}\nv_mov_b32 v130, {SCR+o}\nds_write_b32 v130, v129\ns_waitcnt lgkmcnt(0)')
    def bcast_read(sreg, o=0): P(f'v_mov_b32 v130, {SCR+o}\nds_read_b32 v129, v130\ns_waitcnt lgkmcnt(0)\nv_readfirstlane_b32 s{sreg}, v129')
    def set_flag(val):
        P(f'v_mov_b32 v129, {val}\ns_mov_b64 exec, 1\nbuffer_store_byte v129, v{vZERO}, s[{S_DBG}:{S_DBG+3}], s{sPL} offen sc1\ns_waitcnt vmcnt(0)\ns_mov_b64 exec, -1')
    vIB = [157, 158]; vO1B = [176 + 4, 176 + 5]; vO2B = [182, 183]
    P('s_load_dwordx2 s[56:57], s[0:1], 80\ns_load_dwordx2 s[60:61], s[0:1], 96')
    P(f's_lshr_b32 s{sCLU}, s{sPL}, 3\ns_and_b32 s{sK}, s{sPL}, 7')
    P(f'v_mbcnt_lo_u32_b32 v{vLANE}, -1, 0\nv_mbcnt_hi_u32_b32 v{vLANE}, -1, v{vLANE}')
    P(f'v_and_b32 v131, 7, v{vLANE}\ns_lshl_b32 s48, s{sCLU}, 3')
    P(f's_cmp_lg_u32 s{sW}, 0\ns_cbranch_scc1 L_fr_nolook')
    P(f'buffer_load_ubyte v132, v131, s[{S_DBG}:{S_DBG+3}], s48 offen sc1')
    P.label('L_fr_nolook')
    P(f'v_and_b32 v{vN}, 15, v{vLANE}\nv_lshrrev_b32 v{vG}, 4, v{vLANE}')
    P(f'v_mul_u32_u24 v{vOB}, 1792, v{vN}\nv_lshlrev_b32 v136, 3, v{vG}\nv_add_u32 v{vOB}, v{vOB}, v136')
    P(f's_lshr_b32 s62, s{sCLU}, 4\ns_and_b32 s63, s{sCLU}, 15\ns_mul_i32 s63, s63, 144\ns_mul_i32 s62, s62, 448')
    for p in range(8): P(f's_mov_b32 s{sPl[p]}, {p*PLANE}')
    P('v_mov_b32 v168, 0x3f80\nv_mov_b32 v169, 0x3f800000')
    P('s_waitcnt lgkmcnt(0)')
    P(f's_mul_i32 s46, s{sCLU}, {8*PLANE}\ns_add_u32 s60, s60, s46\ns_addc_u32 s61, s61, 0')
    srd(P, S_CL, 60, 61, 8 * PLANE)
    srd(P, S_OUT, 56, 57, 16 * 144 * 896 * 2)
    for q in range(3): job_addr(q, f's_add_u32 s{sI}, s{sW}, {4*q}', 0, 8, 4, f'a{q}')
    sv = (list(vI), list(vO1), list(vO2))
    vI[:2] = vIB; vO1[:2] = vO1B; vO2[:2] = vO2B
    for q in range(2): job_addr(q, f's_add_u32 s{sI}, s{sW}, {4*q}', 4, 6, 7, f'b{q}')
    svB = (list(vI), list(vO1), list(vO2))
    vI[:], vO1[:], vO2[:] = sv
    P(f's_mov_b32 s{sMASK}, 0')
    P(f's_cmp_lg_u32 s{sW}, 0\ns_cbranch_scc1 L_fr_a_join')
    P('s_waitcnt vmcnt(0)')
    P(f'v_and_b32 v137, 1, v132\nv_cmp_ne_u32 vcc, 0, v137\ns_nop 1\ns_cmp_eq_u64 vcc, -1\ns_cbranch_scc1 L_fr_a_ok')
    P('s_mov_b32 s46, s48')
    poll(1, 'L_fr_a_ok', 'L_fr_a_to')
    P.label('L_fr_a_to'); P(f's_mov_b32 s{sMASK}, 1\ns_branch L_fr_a_pub')
    P.label('L_fr_a_ok')
    P(f'v_and_b32 v137, 2, v132\nv_cmp_ne_u32 vcc, 0, v137\nv_cmp_eq_u32 s[56:57], s{sK}, v131\ns_nop 1\ns_or_b64 vcc, vcc, s[56:57]')
    P(f's_cmp_eq_u64 vcc, -1\ns_cbranch_scc0 L_fr_a_pub')
    P(f'v_and_b32 v137, 4, v132\nv_cmp_ne_u32 vcc, 0, v137\ns_nop 1\ns_and_b32 s{sMASK}, vcc_lo, 0xff\ns_or_b32 s{sMASK}, s{sMASK}, 0x200')
    P.label('L_fr_a_pub'); bcast_write(sMASK)
    P.label('L_fr_a_join')
    P('s_waitcnt vmcnt(0)\ns_barrier')
    bcast_read(sMASK)
    P(f's_cmp_eq_u32 s{sMASK}, 1\ns_cbranch_scc1 L_fr_generic')
    stamp(P, 'fr_apolled')
    P(f's_cmp_lg_u32 s{sW}, 0\ns_cbranch_scc1 L_fr_pub_done')
    P(f'v_mov_b32 v129, 3\ns_mov_b64 exec, 1\nbuffer_store_byte v129, v{vZERO}, s[{S_DBG}:{S_DBG+3}], s{sPL} offen sc1\ns_mov_b64 exec, -1')
    P.label('L_fr_pub_done')
    P(f's_cmp_eq_u32 s{sMASK}, 0\ns_cbranch_scc1 L_fr_staged')
    P(f's_and_b32 s{sMASK}, s{sMASK}, 0xff\ns_lshl_b32 s46, 1, s{sK}\ns_or_b32 s{sMASK}, s{sMASK}, s46\ns_branch L_fr_shares')
    P.label('L_fr_staged')
    loads(range(3))
    sums(list(range(3)))
    stamp(P, 'fr_sumA')
    P(f's_cmp_lg_u32 s{sW}, 0\ns_cbranch_scc1 L_fr_b_join')
    P('s_mov_b32 s46, s48')
    poll(2, 'L_fr_b_ok', 'L_fr_b_to')
    P.label('L_fr_b_to')
    set_flag(7)
    P(f'buffer_load_ubyte v132, v131, s[{S_DBG}:{S_DBG+3}], s46 offen sc1\ns_waitcnt vmcnt(0)')
    P(f'v_and_b32 v137, 2, v132\nv_cmp_ne_u32 vcc, 0, v137\ns_nop 1\ns_mov_b32 s{sMASK}, 0x100\ns_cmp_eq_u64 vcc, -1\ns_cbranch_scc0 L_fr_b_pub')
    P.label('L_fr_b_ok')
    P(f'v_and_b32 v137, 4, v132\nv_cmp_ne_u32 vcc, 0, v137\ns_nop 1\ns_and_b32 s{sMASK}, vcc_lo, 0xff')
    P.label('L_fr_b_pub'); bcast_write(sMASK, 4)
    P.label('L_fr_b_join')
    P('s_barrier'); bcast_read(sMASK, 4)
    P(f's_cmp_eq_u32 s{sMASK}, 0x100\ns_cbranch_scc1 L_fr_end')
    stamp(P, 'fr_bpolled')
    vI[:], vO1[:], vO2[:] = svB
    loads(range(2))
    sums(list(range(2)))
    vI[:], vO1[:], vO2[:] = sv
    P(f's_cmp_eq_u32 s{sMASK}, 0\ns_cbranch_scc1 L_fr_end')
    P('s_waitcnt vmcnt(0)\ns_branch L_fr_shares')
    P.label('L_fr_generic')
    P('s_waitcnt vmcnt(0)\ns_barrier')
    P(f's_cmp_lg_u32 s{sW}, 0\ns_cbranch_scc1 L_fr_g_join')
    set_flag(3)
    P('s_mov_b32 s46, s48')
    poll(2, 'L_fr_g_ok', 'L_fr_g_to')
    P.label('L_fr_g_to')
    set_flag(7)
    P(f'buffer_load_ubyte v132, v131, s[{S_DBG}:{S_DBG+3}], s46 offen sc1\ns_waitcnt vmcnt(0)')
    P(f'v_and_b32 v137, 2, v132\nv_cmp_ne_u32 vcc, 0, v137\ns_nop 1\ns_mov_b32 s{sMASK}, 0\ns_cmp_eq_u64 vcc, -1\ns_cbranch_scc0 L_fr_g_pub')
    P.label('L_fr_g_ok')
    P(f'v_and_b32 v137, 4, v132\nv_cmp_ne_u32 vcc, 0, v137\ns_nop 1\ns_and_b32 s{sMASK}, vcc_lo, 0xff\ns_lshl_b32 s46, 1, s{sK}\ns_or_b32 s{sMASK}, s{sMASK}, s46')
    P.label('L_fr_g_pub'); bcast_write(sMASK, 8)
    P.label('L_fr_g_join')
    P('s_barrier'); bcast_read(sMASK, 8)
    P.label('L_fr_shares')
    P(f's_mov_b32 s{sK}, 0')
    P.label('L_fr_share')
    P(f's_lshr_b32 s46, s{sMASK}, s{sK}\ns_and_b32 s46, s46, 1\ns_cmp_eq_u32 s46, 0\ns_cbranch_scc1 L_fr_next')
    for q in range(4): job_addr(q, f's_lshl_b32 s{sI}, s{sW}, 2\ns_add_u32 s{sI}, s{sI}, {q}', 0, 14, 7, f'g{q}')
    loads(range(4))
    sums(list(range(4)))
    P('s_waitcnt vmcnt(0)')
    P.label('L_fr_next')
    P(f's_add_u32 s{sK}, s{sK}, 1\ns_cmp_lt_u32 s{sK}, 8\ns_cbranch_scc1 L_fr_share')
    P.label('L_fr_end')
    P('s_waitcnt vmcnt(0)')

RU = int(OPT.get('ru', 1))
RBLK = int(OPT.get('rblk', 256))
RGRID = 1008 // RU * 256 // RBLK
def reduce_kernel(P):
    P.label('reduce_kernel')
    DBGCOPY = ''
    if OPT.get('dbgout'):
        DBGCOPY = ('s_cmp_lg_u32 s2, 0\ns_cbranch_scc1 R_nodbg\ns_load_dwordx2 s[24:25], s[0:1], 88\ns_waitcnt lgkmcnt(0)\ns_sub_u32 s26, s24, 512\ns_subb_u32 s27, s25, 0\n'
                   'v_and_b32 v9, 15, v0\nv_lshlrev_b32 v9, 2, v9\nglobal_load_dword v10, v9, s[26:27] sc1\ns_waitcnt vmcnt(0)\nglobal_store_dword v9, v10, s[24:25]\ns_waitcnt vmcnt(0)\nR_nodbg:')
    P(f"""
s_cmp_ge_u32 s2, {RGRID}
s_cbranch_scc0 R_go
s_endpgm
R_go:
{DBGCOPY}
s_load_dwordx2 s[4:5], s[0:1], 96
s_load_dwordx2 s[6:7], s[0:1], 80
s_lshl_b32 s3, s2, {RBLK.bit_length()-1}
v_add_u32 v1, s3, v0
s_mov_b32 s8, {(2**32 + 8064 - 1)//8064}
s_mov_b32 s9, {8*PLANE}
""")
    for p in range(8): P(f's_mov_b32 s{24+p}, {p*PLANE}')
    D0 = 32
    UB = [2 + 3 * k for k in range(RU)]
    for k in range(RU):
        b = UB[k]
        P(f'v_add_u32 v20, {k * (258048 // RU)}, v1\nv_mul_hi_u32 v{b}, v20, s8\nv_mul_u32_u24 v{b+1}, 8064, v{b}\nv_sub_u32 v{b+1}, v20, v{b+1}')
        P(f'v_mul_lo_u32 v{b+2}, v{b}, s9\nv_lshlrev_b32 v21, 4, v{b+1}\nv_add_u32 v{b+2}, v{b+2}, v21')
    P(f"""
s_waitcnt lgkmcnt(0)
s_mov_b32 s12, s4
s_and_b32 s13, s5, 0xffff
s_mov_b32 s14, {256*PLANE}
s_mov_b32 s15, 0x20000
s_mov_b32 s16, s6
s_and_b32 s17, s7, 0xffff
s_mov_b32 s18, {16*144*896*2}
s_mov_b32 s19, 0x20000
""")
    for k in range(RU):
        for p in range(8):
            d = D0 + (k * 8 + p) * 4
            P(f'buffer_load_dwordx4 v[{d}:{d+3}], v{UB[k]+2}, s[12:15], s{24+p} offen {OPT.get("rednt", "")}')
    T = D0 + RU * 32
    O1 = [T + 2 * k for k in range(RU)]
    t = T + 2 * RU
    for k in range(RU):
        pb, r = UB[k], UB[k] + 1
        o1, o2 = O1[k], O1[k] + 1
        P(f"""
v_and_b32 v{t}, 63, v{r}
v_lshrrev_b32 v{t+1}, 6, v{r}
v_and_b32 v{t+2}, 1, v{t+1}
v_lshrrev_b32 v{t+3}, 1, v{t+1}
v_and_b32 v{t+3}, 1, v{t+3}
v_lshrrev_b32 v{t+4}, 2, v{t+1}
v_and_b32 v{t+4}, 3, v{t+4}
v_lshrrev_b32 v{t+5}, 4, v{t+1}
v_and_b32 v{t+6}, 15, v{t}
v_lshrrev_b32 v{t+7}, 4, v{t}
v_lshlrev_b32 v{o1}, 5, v{t+4}
v_lshlrev_b32 v{t+8}, 4, v{t+3}
v_add_u32 v{o1}, v{o1}, v{t+8}
v_add_u32 v{o1}, v{o1}, v{t+6}
v_lshlrev_b32 v{t+8}, 1, v{t+2}
v_xor_b32 v{t+8}, v{t+8}, v{t+4}
v_lshlrev_b32 v{t+9}, 4, v{t+8}
v_xor_b32 v{t+8}, 1, v{t+8}
v_lshlrev_b32 v{t+10}, 4, v{t+8}
v_lshlrev_b32 v{t+8}, 6, v{t+5}
v_lshlrev_b32 v{t+11}, 2, v{t+7}
v_add_u32 v{t+8}, v{t+8}, v{t+11}
v_add_u32 v{t+9}, v{t+9}, v{t+8}
v_add_u32 v{t+10}, v{t+10}, v{t+8}
v_mov_b32 v{o2}, v{o1}
v_subrev_u32 v{t}, 7168, v{r}
v_lshrrev_b32 v{t+1}, 5, v{t}
v_and_b32 v{t+2}, 31, v{t}
v_lshlrev_b32 v{t+2}, 1, v{t+2}
v_and_b32 v{t+3}, 15, v{t+2}
v_lshrrev_b32 v{t+4}, 4, v{t+2}
v_and_b32 v{t+5}, 3, v{t+1}
v_lshrrev_b32 v{t+6}, 2, v{t+1}
v_lshlrev_b32 v{t+6}, 6, v{t+6}
v_lshlrev_b32 v{t+5}, 4, v{t+5}
v_add_u32 v{t+6}, v{t+6}, v{t+5}
v_lshlrev_b32 v{t+4}, 2, v{t+4}
v_add_u32 v{t+6}, v{t+6}, v{t+4}
v_add_u32 v{t+3}, 128, v{t+3}
v_add_u32 v{t+7}, 1, v{t+3}
v_cmp_le_u32 vcc, 7168, v{r}
s_nop 1
v_cndmask_b32 v{o1}, v{o1}, v{t+3}, vcc
v_cndmask_b32 v{o2}, v{o2}, v{t+7}, vcc
v_cndmask_b32 v{t+9}, v{t+9}, v{t+6}, vcc
v_cndmask_b32 v{t+10}, v{t+10}, v{t+6}, vcc
v_lshrrev_b32 v{t}, 4, v{pb}
v_and_b32 v{t+1}, 15, v{pb}
v_mul_u32_u24 v{t+1}, 144, v{t+1}
v_mul_u32_u24 v{t}, 448, v{t}
v_add_u32 v{o1}, v{o1}, v{t+1}
v_add_u32 v{o2}, v{o2}, v{t+1}
v_mul_u32_u24 v{o1}, 896, v{o1}
v_mul_u32_u24 v{o2}, 896, v{o2}
v_add_u32 v{o1}, v{o1}, v{t}
v_add_u32 v{o2}, v{o2}, v{t}
v_add_u32 v{o1}, v{o1}, v{t+9}
v_add_u32 v{o2}, v{o2}, v{t+10}
v_lshlrev_b32 v{o1}, 1, v{o1}
v_lshlrev_b32 v{o2}, 1, v{o2}
""")
    acc = t; tm = t + 8; oo = t + 10
    for k in range(RU):
        for p in range(8):
            P(f's_waitcnt vmcnt({RU*8 - 1 - (k*8+p) + 2*k})')
            for d in range(4):
                src = D0 + (k * 8 + p) * 4 + d
                if p == 0:
                    P(f'v_lshlrev_b32 v{acc+2*d}, 16, v{src}\nv_and_b32 v{acc+2*d+1}, 0xffff0000, v{src}')
                else:
                    P(f'v_lshlrev_b32 v{tm}, 16, v{src}\nv_and_b32 v{tm+1}, 0xffff0000, v{src}\nv_add_f32 v{acc+2*d}, v{acc+2*d}, v{tm}\nv_add_f32 v{acc+2*d+1}, v{acc+2*d+1}, v{tm+1}')
        o = oo + 4 * (k & 1)
        o += o & 1
        for d in range(4): P(f'v_cvt_pk_bf16_f32 v{o+d}, v{acc+2*d}, v{acc+2*d+1}')
        P(f'buffer_store_dwordx2 v[{o}:{o+1}], v{O1[k]}, s[16:19], 0 offen')
        P(f'buffer_store_dwordx2 v[{o+2}:{o+3}], v{O1[k]+1}, s[16:19], 0 offen')
    P('s_waitcnt vmcnt(0)\ns_endpgm')
    P.label('R_end')
    global RVGPR
    RVGPR = ((oo + 10 + 7) // 8) * 8

HEADER = open('header.txt').read()

def dump_regs(P, regs, acc=False, base=0):
    P('v_mbcnt_lo_u32_b32 v253, -1, 0\nv_mbcnt_hi_u32_b32 v253, -1, v253')
    P(f's_lshl_b32 s{sT0}, s{sW}, 6\nv_add_u32 v253, s{sT0}, v253\nv_lshlrev_b32 v253, 2, v253')
    for k, r in enumerate(regs):
        P(f's_mov_b32 s{sT0}, {base + k*1024}')
        if acc:
            P(f'v_accvgpr_read_b32 v254, a{r}\ns_nop 1\nbuffer_store_dword v254, v253, s[{SRD_WS}:{SRD_WS+3}], s{sT0} offen')
        else:
            P(f'buffer_store_dword v{r}, v253, s[{SRD_WS}:{SRD_WS+3}], s{sT0} offen')
    P('s_waitcnt vmcnt(0)')

def dump_lds(P, off, nbytes, base):
    P('v_mbcnt_lo_u32_b32 v253, -1, 0\nv_mbcnt_hi_u32_b32 v253, -1, v253')
    P(f's_lshl_b32 s{sT0}, s{sW}, 6\nv_add_u32 v253, s{sT0}, v253\nv_lshlrev_b32 v253, 2, v253')
    P(f'v_add_u32 v252, {off}, v253')
    for k in range(nbytes // 1024):
        P(f'ds_read_b32 v254, v252 offset:{k*1024}\ns_waitcnt lgkmcnt(0)\ns_mov_b32 s{sT0}, {base + k*1024}')
        P(f'buffer_store_dword v254, v253, s[{SRD_WS}:{SRD_WS+3}], s{sT0} offen\ns_waitcnt vmcnt(0)')

def slow_path(P, stats):
    vM = [160, 161, 162, 163]; vM9 = 164; tmp = 165
    S0 = vX[1]
    poolA = POOL + [vP9f, vP9f + 4]
    st_ = {}
    P.lines.append('; ---- fallback: pass 1 = true row maxima, pass 2 = attention with P = exp2(S - max); rejoins at L_tail')
    P.label('L_slow')
    P(f's_mov_b32 s{sSLOW}, 1')
    P(f's_cmp_eq_u32 s{sB}, 1\ns_cbranch_scc1 L_slow1')
    for kt9 in range(2):
        if kt9 == 1: P.label('L_slow1')
        for r in vM + [vM9]: P(f'v_mov_b32 v{r}, 0xff800000')
        P(f's_mov_b32 s{sKV}, 0\ns_mov_b32 s{sCNT}, 32')
        P.label(f'L_smax{kt9}')
        for t in dmaKV('K', sKV, 0): P(t)
        P('s_waitcnt vmcnt(0)\ns_barrier')
        A, _ = phaseA_items(0, kt9, poolA, kslot=0, S0=S0, noentry=True)
        schedule(P, A, [], stats=st_, lead=LEAD, urgent=URG, burst=3)
        P('s_nop 7')
        for qt in range(4):
            for S in (Sr(S0, qt), Sr(vY, qt)):
                P(f'v_max3_f32 v{vM[qt]}, v{vM[qt]}, v{S}, v{S+1}\nv_max3_f32 v{vM[qt]}, v{vM[qt]}, v{S+2}, v{S+3}')
        P(f'v_max3_f32 v{vM9}, v{vM9}, v{vS9}, v{vS9+1}\nv_max3_f32 v{vM9}, v{vM9}, v{vS9+2}, v{vS9+3}')
        P(f's_waitcnt lgkmcnt(0)\ns_barrier')
        P(f's_add_u32 s{sKV}, s{sKV}, 16384\ns_sub_u32 s{sCNT}, s{sCNT}, 1\ns_cmp_lg_u32 s{sCNT}, 0\ns_cbranch_scc1 L_smax{kt9}')
        for r in vM + [vM9]: reduce4(P, r, tmp, op='v_max_f32')
        P(f'v_mbcnt_lo_u32_b32 v{tmp}, -1, 0\nv_mbcnt_hi_u32_b32 v{tmp}, -1, v{tmp}\nv_lshlrev_b32 v{tmp}, 2, v{tmp}')
        P(f's_lshl_b32 s{sT0}, s{sW}, 8\ns_add_u32 s{sT0}, s{sT0}, {SCR}\nv_add_u32 v{tmp+1}, s{sT0}, v{tmp}')
        P(f's_xor_b32 s{sT0}, s{sW}, 1\ns_lshl_b32 s{sT0}, s{sT0}, 8\ns_add_u32 s{sT0}, s{sT0}, {SCR}\nv_add_u32 v{tmp+2}, s{sT0}, v{tmp}')
        P(f'ds_write_b32 v{tmp+1}, v{vM9}\ns_waitcnt lgkmcnt(0)\ns_barrier\nds_read_b32 v{tmp+3}, v{tmp+2}\ns_waitcnt lgkmcnt(0)\nv_max_f32 v{vM9}, v{vM9}, v{tmp+3}')
        for r in range(256): P(f'v_accvgpr_write_b32 a{r}, 0')
        for r in range(32): P(f'v_mov_b32 v{vO9+r}, 0')
        for r in vL + [vL9]: P(f'v_mov_b32 v{r}, 0')
        P(f's_mov_b32 s{sKV}, 0\ns_mov_b32 s{sCNT}, 32')
        P.label(f'L_sloop{kt9}')
        P(f's_add_u32 s{sT3}, s{sKV}, 16384')
        for t in dmaKV('K', sKV, 0): P(t)
        for t in dmaKV('V', sT3, 2): P(t)
        P('s_waitcnt vmcnt(0)\ns_barrier')
        A, _ = phaseA_items(0, kt9, poolA, kslot=0, S0=S0, noentry=True)
        schedule(P, A, [], stats=st_, lead=LEAD, urgent=URG, burst=3)
        P('s_nop 7')
        def sm(src, dst2, l, m):
            for r in range(4): P(f'v_sub_f32 v{src+r}, v{src+r}, v{m}')
            for r in range(4): P(f'v_exp_f32 v{src+r}, v{src+r}')
            P('s_nop 0')
            for r in range(4): P(f'v_add_f32 v{l}, v{l}, v{src+r}')
            P(f'v_cvt_pk_bf16_f32 v{dst2}, v{src}, v{src+1}\nv_cvt_pk_bf16_f32 v{dst2+1}, v{src+2}, v{src+3}')
        for qt in range(4):
            sm(Sr(S0, qt), Sr(S0, qt), vL[qt], vM[qt])
            sm(Sr(vY, qt), Sr(S0, qt) + 2, vL[qt], vM[qt])
        sm(vS9, vS9, vL9, vM9)
        P(f'ds_write_b64 v{vP9w}, v[{vS9}:{vS9+1}] offset:2048')
        P('s_waitcnt lgkmcnt(0)\ns_barrier')
        P(f's_sub_u32 s{sCNT}, s{sCNT}, 1\ns_cmp_eq_u32 s{sCNT}, 0\ns_cbranch_scc0 L_spv{kt9}\ns_branch L_tail')
        P.label(f'L_spv{kt9}')
        B = phaseB_items(3)
        schedule(P, B, [], stats=st_, lead=LEAD, urgent=URG, burst=3)
        P('s_waitcnt lgkmcnt(0)\ns_barrier')
        P(f's_add_u32 s{sKV}, s{sKV}, 16384\ns_branch L_sloop{kt9}')

DOC = '''; ---------------------------------------------------------------------------------------------------------------
; ---------------------------------------------------------------------------------------------------------------'''

def main():
    P = Prog(); stats = {}
    kname = NAME + '_kernel'
    P.label(kname)
    setup(P); stamp(P, 'start'); lane_consts(P)
    segdone = qproj(P, stats)
    stamp(P, 'qproj_done')
    if segdone:
        pass
    elif DEBUG == 'q':
        dump_regs(P, list(range(128)))
        dump_lds(P, Q9B, 16384, 131072)
        P('s_endpgm')
    else:
        attention(P, stats)
        tail_and_out(P, stats)
        stamp(P, 'out_done')
        stamp_flush(P)
        P('s_endpgm')
        slow_path(P, stats)
        P.label('L_kend')
    lines, nfix = check_hazards(P.lines, verbose=bool(OPT.get('v')))
    if not OPT.get("seg"): check_waits(lines)
    R = Prog(); reduce_kernel(R)
    rl, nf2 = check_hazards(R.lines)
    check_waits(rl)
    if PROF: print('stamps', STN, file=sys.stderr)
    print('stats', stats, 'hazard nops', nfix, nf2, 'instrs', len(lines), file=sys.stderr)
    out = [HEADER.rstrip('\n')]
    if PROF: out.append('; STAMPS ' + ','.join(STN))
    if FUSE and not OPT.get('aslist'):
        out.append(f'; @launch grid=(256,1,1) block=(256,1,1) lds={LDS_TOTAL}')
    else:
        out.append(f'; @launch kernel={kname} grid=(256,1,1) block=(256,1,1) lds={LDS_TOTAL}')
        if not DEBUG and not FUSE: out.append(f'; @launch kernel=reduce_kernel grid=({RGRID},1,1) block=({RBLK},1,1) lds=0')
    out.append(DOC)
    out.append('.amdgcn_target "amdgcn-amd-amdhsa--gfx950"\n.text')
    out.append(f'.globl {kname}\n.p2align 8\n.type {kname},@function')
    out += lines
    if not FUSE:
        out.append('.globl reduce_kernel\n.p2align 8\n.type reduce_kernel,@function')
        out += rl
    out.append('.section .rodata,"a"')
    for nm, vg, acc, sg in ((kname, 512, 256, 102 if PROF else 96), ('reduce_kernel', RVGPR, RVGPR, 40))[:(1 if FUSE else 2)]:
        out.append(f""".p2align 6
.amdhsa_kernel {nm}
  .amdhsa_next_free_vgpr {vg}
  .amdhsa_next_free_sgpr {sg}
  .amdhsa_accum_offset {acc}
  .amdhsa_group_segment_fixed_size 0
  .amdhsa_kernarg_size 104
  .amdhsa_user_sgpr_count 2
  .amdhsa_user_sgpr_kernarg_segment_ptr 1
  .amdhsa_system_sgpr_workgroup_id_x 1
.end_amdhsa_kernel""")
    dst = OPT.get('o', 'cdna_kernels/' + NAME + '.s')
    open(dst, 'w').write('\n'.join(out) + '\n')

main()
```

```python
import sys, struct
from asmlib import *
from sched import *

NAME = 'concat_heads__gqa_block_cached__gqa_block_cached__near_ridge'
DEBUG = ''
for a in sys.argv[1:]:
    if a.startswith('--debug='): DEBUG = a.split('=')[1]
OPT = {}
for a in sys.argv[1:]:
    if a.startswith('--') and '=' in a:
        k, v = a[2:].split('='); OPT[k] = v

KB = 0; VB = 65536; Q9B = 131072; P9B = 147456; SCR = 151552; LDS_TOTAL = 163840
W1 = 57344
PLANE = 129024
SRD_X, SRD_WQ, SRD_K, SRD_V, SRD_WO, SRD_WS = 4, 8, 12, 16, 20, 24
sW, sW1K, sKV, sCNT, sC, sT0, sT1, sT2, sT3, sX2 = 28, 29, 30, 31, 32, 33, 34, 35, 36, 37
sA, sB = 38, 39
sOFF = 40
sG = 41
sW4K = 60
sJ = 50
sPL = 51
vQ = 0; vO9 = 128; vX = [160, 176]; vY = 192; vS9 = 208; vP9f = 212; POOL = [220, 224, 228, 232]
vK = [236, 237]; vV = [238, 239, 240, 241]; vQ9 = [242, 243]; vP9r = 244; vP9w = 245; vDK = 246; vDV = 247
vL = [248, 249, 250, 251]; vL9 = 252; vT = [253, 254, 255]
vACC = [128, 160]; vACC9 = [208, 212]; PPOOL = [192, 196, 200, 204, 220, 224, 228, 232]
vW = [216, 217, 218, 219]; vDW = 253; vQ9w = 254
CSCALE = struct.unpack('<I', struct.pack('<f', 1.4426950408889634 / 16.0))[0]

PROF = OPT.get('prof')
KEND = 'R_end' if (OPT.get('pfred', '1') == '1' and OPT.get('fuse', '0') != '1') else 'L_kend'
FUSE = OPT.get('fuse', '0') == '1'
SPIN = int(OPT.get('spin', 20000))
DOT2 = OPT.get('dot2', '1') == '1'
S_DBG = 4
vONE, vZERO = 248, 249
NOWAITQ = OPT.get('nowaitq')
NTW = OPT.get('ntw', 'nt').replace('none', '')
NTKV = OPT.get('ntkv', 'nt').replace('none', '')
NTX = OPT.get('ntx', 'none').replace('none', '')
NST = [0]
def stamp(P, name):
    if not PROF: return
    if PROF != '1' and name not in PROF.split(',') and name not in ('start', 'out_done'): return
    k = NST[0]; NST[0] += 1
    assert k < 16
    P(f's_memtime s[{64+2*k}:{65+2*k}]')
    if k == 0: P('s_memrealtime s[96:97]')
    STN.append(name)
STN = []
def stamp_flush(P):
    if not PROF: return
    P('s_memrealtime s[98:99]')
    if OPT.get('dbgout'):
        P(f's_load_dwordx2 s[62:63], s[0:1], 88\ns_waitcnt lgkmcnt(0)')
        P(f's_cmp_lg_u32 s2, {OPT["dbgout"]}\ns_cbranch_scc1 L_noprof\ns_cmp_lg_u32 s{sW}, 0\ns_cbranch_scc1 L_noprof')
        P('v_mov_b32 v1, 0')
        for k in range(1, NST[0]):
            P(f's_sub_u32 s46, s{64+2*k}, s{64+2*(k-1)}\nv_mov_b32 v2, s46\nglobal_store_dword v1, v2, s[62:63] offset:{4*(k-1)}')
        P(f's_sub_u32 s46, s98, s96\nv_mov_b32 v2, s46\nglobal_store_dword v1, v2, s[62:63] offset:60')
        P('s_waitcnt vmcnt(0)')
        P.label('L_noprof')
        return
    P(f's_load_dwordx2 s[62:63], s[0:1], 96\ns_waitcnt lgkmcnt(0)')
    P(f's_lshl_b32 s46, s2, 8\ns_add_u32 s46, s46, {200*1024*1024}\ns_add_u32 s62, s62, s46\ns_addc_u32 s63, s63, 0')
    P(f's_cmp_lg_u32 s{sW}, 0\ns_cbranch_scc1 L_noprof')
    P('v_mov_b32 v1, 0')
    for k in range(NST[0]):
        P(f'v_mov_b32 v2, s{64+2*k}\nglobal_store_dword v1, v2, s[62:63] offset:{128+4*k}')
    P(f'v_mov_b32 v2, s96\nglobal_store_dword v1, v2, s[62:63] offset:0')
    P(f'v_mov_b32 v2, s98\nglobal_store_dword v1, v2, s[62:63] offset:4')
    P('s_waitcnt vmcnt(0)')
    P.label('L_noprof')

def final_lgkm(lgq, exitf):
    n = 0
    for x in reversed(lgq):
        if x is not None and any(x is f for f in exitf): n += 1
        else: break
    return min(n, 15)

class VMQ:
    def __init__(s): s.q = []
    def issue(s, tag, n): s.q += [tag] * n
    def need(s, tags):
        last = -1
        for i, t in enumerate(s.q):
            if t in tags: last = i
        n = len(s.q) - 1 - last
        s.q = s.q[last + 1:]
        return n
VM = VMQ()

def srd(P, s, base_lo, base_hi, size):
    P(f's_mov_b32 s{s}, s{base_lo}\ns_and_b32 s{s+1}, s{base_hi}, 0xffff\ns_mov_b32 s{s+2}, {size}\ns_mov_b32 s{s+3}, 0x20000')

def setup(P):
    P(f'''
s_cmp_ge_u32 s2, 256
s_cbranch_scc0 L_go
s_endpgm
L_go:
s_lshr_b32 s42, s2, 1
s_and_b32 s42, s42, 1
s_lshr_b32 s43, s2, 3
s_and_b32 s43, s43, 3
s_lshl_b32 s43, s43, 1
s_or_b32 s42, s42, s43
s_lshr_b32 s44, s2, 2
s_and_b32 s44, s44, 1
s_lshr_b32 s47, s2, 5
s_lshl_b32 s45, s47, 1
s_and_b32 s43, s2, 1
s_or_b32 s45, s45, s43
s_mov_b32 s{sJ}, s47
s_lshl_b32 s43, s44, 4
s_add_u32 s43, s43, s45
s_lshl_b32 s43, s43, 3
s_add_u32 s43, s43, s42
s_mov_b32 s{sPL}, s43
s_mul_i32 s46, s44, 40
s_add_u32 s48, s0, s46
s_addc_u32 s49, s1, 0
s_load_dwordx8 s[52:59], s[48:49], 0
s_load_dwordx2 s[60:61], s[48:49], 32
s_load_dwordx2 s[62:63], s[0:1], 96
v_lshrrev_b32 v1, 6, v0
v_and_b32 v2, 63, v0
s_nop 0
v_readfirstlane_b32 s{sW}, v1
''')
    if OPT.get('codefirst', '1') == '1':
        P('s_getpc_b64 s[64:65]')
        P.label('L_pc')
        P(f's_lshr_b32 s66, s2, 3\ns_lshl_b32 s66, s66, 12\ns_lshl_b32 s67, s{sW}, 10\ns_add_u32 s66, s66, s67')
        P(f's_min_u32 s66, s66, {KEND}-L_pc-1024')
        P(f'v_lshlrev_b32 v16, 4, v2\nv_add_u32 v16, s66, v16\nv_mov_b32 v17, s65\nv_add_co_u32 v16, vcc, s64, v16\ns_nop 1\nv_addc_co_u32 v17, vcc, 0, v17, vcc')
        P('global_load_dwordx4 v[20:23], v[16:17], off')
        VM.issue('warm', 1)
    P('s_waitcnt lgkmcnt(0)')
    P(f's_mul_i32 s46, s45, 129024\ns_add_u32 s52, s52, s46\ns_addc_u32 s53, s53, 0')
    srd(P, SRD_X, 52, 53, 129024)
    P(f's_lshl_b32 s46, s45, 3\ns_add_u32 s46, s46, s42\ns_lshr_b32 s47, s46, 13\ns_lshl_b32 s46, s46, 19')
    P(f's_add_u32 s54, s54, s46\ns_addc_u32 s55, s55, s47')
    srd(P, SRD_K, 54, 55, 524288)
    P(f's_add_u32 s56, s56, s46\ns_addc_u32 s57, s57, s47')
    P(f's_sub_u32 s56, s56, 16384\ns_subb_u32 s57, s57, 0')
    srd(P, SRD_V, 56, 57, 524288 + 16384)
    P(f's_lshl_b32 s46, s42, 10\ns_add_u32 s58, s58, s46\ns_addc_u32 s59, s59, 0')
    srd(P, SRD_WQ, 58, 59, 0)
    P(f's_sub_u32 s{SRD_WQ+2}, {448*8192}, s46')
    P(f's_mul_i32 s46, s42, 458752\ns_add_u32 s60, s60, s46\ns_addc_u32 s61, s61, 0')
    srd(P, SRD_WO, 60, 61, 458752)
    stride = PLANE if not DEBUG else 1048576
    P(f's_mul_i32 s46, s{sPL}, {stride}\ns_add_u32 s62, s62, s46\ns_addc_u32 s63, s63, 0')
    srd(P, SRD_WS, 62, 63, stride)
    P(f'''
s_lshl_b32 s{sW1K}, s{sW}, 10
s_lshr_b32 s{sA}, s{sW}, 1
s_and_b32 s{sB}, s{sW}, 1
s_mov_b32 s{sC}, {CSCALE}
s_mov_b32 s{sX2}, 14336
s_mov_b32 s49, 0
''')
    P('v_and_b32 v3, 15, v2\nv_lshrrev_b32 v4, 4, v2')

def lane_consts(P):
    P(f's_lshl_b32 s{sT0}, s{sB}, 1')
    P(f'v_xor_b32 v5, s{sT0}, v4')
    P(f'v_lshrrev_b32 v6, 1, v3')
    P(f'v_xor_b32 v6, v5, v6')
    P(f's_lshl_b32 s{sT1}, s{sA}, 2')
    P(f'v_xor_b32 v7, s{sT1}, v6')
    P(f'v_lshlrev_b32 v7, 4, v7\nv_lshlrev_b32 v8, 7, v3')
    P(f'v_add_u32 v{vK[0]}, v7, v8\nv_xor_b32 v{vK[1]}, 64, v{vK[0]}')
    P(f'v_lshlrev_b32 v7, 4, v5\nv_add_u32 v7, v7, v3\nv_lshlrev_b32 v7, 4, v7')
    P(f's_mul_i32 s{sT1}, s{sA}, {8192+1024}\ns_add_u32 s{sT1}, s{sT1}, {Q9B}')
    P(f'v_add_u32 v{vQ9[0]}, s{sT1}, v7\nv_xor_b32 v{vQ9[1]}, 0x400, v{vQ9[0]}')
    P('v_lshrrev_b32 v9, 2, v3')
    P('v_lshrrev_b32 v10, 1, v3\nv_and_b32 v10, 1, v10')
    P('v_and_b32 v11, 1, v3\nv_lshlrev_b32 v11, 3, v11')
    P('v_lshlrev_b32 v12, 2, v4\nv_add_u32 v12, v12, v9')
    P('v_and_b32 v13, 6, v12')
    P(f's_lshl_b32 s{sT1}, s{sW}, 1')
    P(f'v_xor_b32 v14, s{sT1}, v10')
    P('v_xor_b32 v14, v14, v13\nv_lshlrev_b32 v14, 4, v14')
    P('v_lshlrev_b32 v15, 7, v12\nv_add_u32 v14, v14, v15\nv_add_u32 v14, v14, v11')
    P(f'v_add_u32 v{vV[0]}, {VB}, v14')
    for u in (1, 2, 3): P(f'v_xor_b32 v{vV[u]}, {u*32}, v{vV[0]}')
    P('v_lshlrev_b32 v12, 3, v4\nv_add_u32 v12, v12, v9')
    P('v_and_b32 v13, 2, v9\nv_and_b32 v15, 1, v4\nv_lshlrev_b32 v15, 2, v15\nv_or_b32 v13, v13, v15')
    P(f'v_xor_b32 v14, s{sT1}, v10\nv_xor_b32 v14, v14, v13\nv_lshlrev_b32 v14, 4, v14')
    P(f'v_lshlrev_b32 v15, 7, v12\nv_add_u32 v14, v14, v15\nv_add_u32 v{vW[0]}, v14, v11')
    for u in (1, 2, 3): P(f'v_xor_b32 v{vW[u]}, {u*32}, v{vW[0]}')
    P(f'v_lshlrev_b32 v7, 4, v2\nv_add_u32 v{vP9r}, {P9B}, v7')
    P(f's_lshl_b32 s{sT0}, s{sA}, 10\ns_lshl_b32 s{sT1}, s{sB}, 3\ns_add_u32 s{sT0}, s{sT0}, s{sT1}')
    P(f'v_add_u32 v{vP9w}, s{sT0}, v{vP9r}')
    P(f's_lshl_b32 s{sT0}, s{sB}, 1\nv_lshrrev_b32 v7, 1, v4\nv_add_u32 v7, s{sT0}, v7\nv_lshlrev_b32 v7, 4, v7\nv_add_u32 v7, v7, v3\nv_lshlrev_b32 v7, 4, v7')
    P(f'v_and_b32 v8, 1, v4\nv_lshlrev_b32 v8, 3, v8\nv_add_u32 v7, v7, v8')
    P(f's_lshl_b32 s{sT0}, s{sA}, 10\ns_add_u32 s{sT0}, s{sT0}, {Q9B}\nv_add_u32 v{vQ9w}, s{sT0}, v7')
    P('v_lshrrev_b32 v7, 3, v2\nv_and_b32 v8, 7, v2')
    if OPT.get('wcol', '0') == '1':
        P(f's_lshl_b32 s{sT0}, s{sB}, 2')
        P(f'v_xor_b32 v9, v8, v4\nv_lshlrev_b32 v9, 4, v9\nv_lshlrev_b32 v12, 9, v7')
        P(f's_lshl_b32 s{sT1}, s{sW}, 7\nv_add_u32 v12, s{sT1}, v12\nv_add_u32 v{vDK}, v9, v12')
    else:
        P(f's_lshl_b32 s{sT0}, s{sB}, 2\nv_add_u32 v9, s{sT0}, v4\nv_xor_b32 v9, v8, v9\nv_lshlrev_b32 v9, 4, v9\nv_lshlrev_b32 v12, 9, v7')
        P(f's_lshl_b32 s{sT1}, s{sW}, 12\nv_add_u32 v12, s{sT1}, v12\nv_add_u32 v{vDK}, v9, v12')
    P(f'v_and_b32 v9, 6, v7\nv_xor_b32 v9, v8, v9\nv_lshlrev_b32 v9, 4, v9\nv_add_u32 v{vDV}, v9, v12')
    P(f'v_and_b32 v9, 2, v7\nv_or_b32 v9, s{sT0}, v9\nv_xor_b32 v9, v8, v9\nv_lshlrev_b32 v9, 4, v9\nv_lshlrev_b32 v12, 13, v7')
    P(f's_lshl_b32 s{sT1}, s{sW}, 16\nv_add_u32 v12, s{sT1}, v12\nv_add_u32 v{vDW}, v9, v12')

def dmaW(g):
    hh, cb = g >> 2, g & 3
    buf = (g & 1) * W1
    L = []
    for j in range(14):
        L.append(f's_add_u32 m0, s{sW1K}, {buf + j*4096}')
        L.append(f's_mov_b32 s{sOFF}, {j*262144 + hh*512 + cb*128}')
        L.append(f'buffer_load_dwordx4 v{vDW}, s[{SRD_WQ}:{SRD_WQ+3}], s{sOFF} offen {NTW} lds')
    return L

ROT = OPT.get('rot', '0') == '1'
sROT, sVV, sTK = 61, 62, 63
def set_off(reg, which, tile):
    if not ROT: return [f's_mov_b32 s{reg}, {tile*16384 + (16384 if which == "V" else 0)}']
    L = [f's_add_u32 s{reg}, s{sROT}, {tile*16384}', f's_and_b32 s{reg}, s{reg}, 0x7ffff']
    if which == 'V': L.append(f's_add_u32 s{reg}, s{reg}, 16384')
    return L

WCOL = OPT.get('wcol', '0') == '1'
vDK1 = 255
def dmaKV(which, tile_soff_reg, slot):
    base = (KB if which == 'K' else VB) + slot * 16384
    srdv = SRD_K if which == 'K' else SRD_V
    vo = vDK if which == 'K' else vDV
    L = []
    if WCOL:
        for rg in range(4):
            L.append(f's_add_u32 m0, s{sW4K}, {base + rg*1024}')
            so = tile_soff_reg
            if rg:
                L.append(f's_add_u32 s{sOFF}, s{tile_soff_reg}, {rg*4096}'); so = sOFF
            v = vDK1 if (which == 'K' and rg & 1) else vo
            L.append(f'buffer_load_dwordx4 v{v}, s[{srdv}:{srdv+3}], s{so} offen {NTKV} lds')
        return L
    for cb in range(4):
        L.append(f's_add_u32 m0, s{sW1K}, {base + cb*4096 - cb*128}')
        L.append(f'buffer_load_dwordx4 v{vo}, s[{srdv}:{srdv+3}], s{tile_soff_reg} offen offset:{cb*128} {NTKV} lds')
    return L

vWM = 255
DUMMY = 163840 - 2048
WARM = OPT.get('warm', '0') == '1'
def warm_wq():
    L = [f's_mov_b32 m0, {DUMMY + 1024}']
    for i in range(4):
        L.append(f's_lshl_b32 s{sT2}, s{sT3}, 13' if False else f's_add_u32 s{sT2}, s{sT3}, {i*16*8192}')
        L.append(f'buffer_load_dword v{vWM}, s[{SRD_WQ}:{SRD_WQ+3}], s{sT2} offen nt lds')
    return L
def warm_lin(srdv, sbase, n, step, nt='nt'):
    L = [f's_mov_b32 m0, {DUMMY + 1024}']
    for i in range(n):
        L.append(f's_add_u32 s{sT2}, s{sbase}, {i*step}')
        L.append(f'buffer_load_dword v{vWM}, s[{srdv}:{srdv+3}], s{sT2} offen {nt} lds')
    return L

def xa(qt, ks): return (ks * 2 + qt) * 4
def x9a(ks): return 112 + ks * 4
def Qr(qt, s): return vQ + (qt * 8 + s) * 4
MF = 'v_mfma_f32_16x16x32_bf16'

def conv_tasks(g, NM=None):
    hh, cb = g >> 2, g & 3
    A = vACC[g & 1]; A9 = vACC9[g & 1]
    T = []
    due = (NM - 6) if NM else 10**9
    npre = int(OPT.get('npre', 12))
    def add(txt, deps=(), gdeps=()):
        t = Task(txt, ready=2, due=due, deps=deps, gdeps=gdeps, prio=len(T)); T.append(t); return t
    for qt in range(2):
        for vp in range(2):
            q = Qr(2 * hh + qt, 2 * cb + vp)
            cv = []
            for e in range(2):
                t = A + ((2 * vp + e) * 2 + qt) * 4
                mu = [add(f'v_mul_f32 v{t+r}, s{sC}, v{t+r}') for r in range(4)]
                cv.append(add(f'v_cvt_pk_bf16_f32 v{q+2*e}, v{t}, v{t+1}', deps=mu[:2]))
                cv.append(add(f'v_cvt_pk_bf16_f32 v{q+2*e+1}, v{t+2}, v{t+3}', deps=mu[2:]))
            a = add(f'v_permlane32_swap_b32 v{q}, v{q+2}', gdeps=[cv[0], cv[2], cv[3]])
            b = add(f'v_permlane32_swap_b32 v{q+1}, v{q+3}', gdeps=[cv[1], cv[3], a])
            c = add(f'v_permlane16_swap_b32 v{q}, v{q+2}', gdeps=[a, b])
            d = add(f'v_permlane16_swap_b32 v{q+1}, v{q+3}', gdeps=[b, c])
    mu = [add(f'v_mul_f32 v{A9+r}, s{sC}, v{A9+r}') for r in range(4)]
    c0 = add(f'v_cvt_pk_bf16_f32 v{A9}, v{A9}, v{A9+1}', deps=mu[:2])
    c1 = add(f'v_cvt_pk_bf16_f32 v{A9+1}, v{A9+2}, v{A9+3}', deps=mu[2:] + [c0])
    add(f'ds_write_b64 v{vQ9w}, v[{A9}:{A9+1}] offset:{hh*8192+cb*2048}', deps=[c0, c1])
    if NM is None: return [t.text for t in T]
    return T

XSPLIT = OPT.get('xsplit', '0') == '1'
XDEFER = OPT.get('xdefer', '1')
XDEFER = {'0': 0, '1': 1, '2': 2}[XDEFER]
X2L = []
XNODUP = OPT.get('xnodup', '1') == '1'
E0 = int(OPT.get('e0', 3))
HS = 28672
WS0 = 131072
XS = 18432
sWJ = [52, 53, 54, 55, 56, 57, 58, 59]
vW2 = [248, 249, 250, 251]; vDWc = 252
APOOL = OPT.get('apool', '1') == '1'
if APOOL: PPOOL = [176, 180, 192, 196, 208, 212, 224, 228, 240, 244][:int(OPT.get('npool', 10))]
AF = 'a' if APOOL else 'v'
NPE = int(OPT.get('npe', 5))
PENTRY = PPOOL[:NPE]

def dmaWh(h, with_v=True):
    g_, p = h >> 1, h & 1
    hh, cb = g_ >> 2, g_ & 3
    base = WS0 if (h == 0 or (XSPLIT and h == 2)) else (h & 3) * HS
    L = [f'v_add_u32 v{vDWc}, {p*224*8192 + hh*512 + cb*128}, v{vDW}']
    for j in range(7):
        L.append(f's_add_u32 m0, s{sW1K}, {base + j*4096}')
        L.append(f'buffer_load_dwordx4 v{vDWc}, s[{SRD_WQ}:{SRD_WQ+3}], s{sWJ[j]} offen {NTW} lds')
    return L

def w_frag(h, ksl, up, regs=None):
    if h == 0 or (XSPLIT and h == 2): a, imm = vW2[up], ksl * 4096
    else:
        sl = h & 3
        a = vW[up] if sl < 2 else vW2[up]
        imm = (sl & 1) * HS + ksl * 4096
    return Frag('tr', a, imm, pool=PPOOL, imm2=imm + 512, regs=regs, acc=APOOL)

def spread(ch, lo, hi):
    vm = [t for t in ch if t.text.startswith('buffer')]
    n = len(vm); k = 0
    pos = [lo + (hi - lo) * i // max(n, 1) for i in range(n)]
    for t in ch:
        j = min(k, n - 1)
        t.ready = max(0, pos[j] - (0 if t.text.startswith('buffer') else 2)); t.due = pos[j] + 5
        if t.text.startswith('buffer'): k += 1
    return ch

def qproj(P, stats):
    P.lines.append('; ---- Q projection: x staged through LDS into B fragments (AGPRs), 16 half-stages of wq')
    sepb = lambda t: t.startswith('buffer')
    for j in range(7): P(f's_mov_b32 s{sWJ[j]}, {j*32*8192}')
    P(f's_lshl_b32 s{sW4K}, s{sW}, 12\nv_lshlrev_b32 v{vWM}, 4, v2')
    if ROT: P(f's_lshr_b32 s{sROT}, s2, 3\ns_lshl_b32 s{sROT}, s{sROT}, 14')
    if WCOL: P(f'v_xor_b32 v{vDK1}, 64, v{vDK}')
    if WARM:
        P(f'v_lshlrev_b32 v{vWM}, 13, v4\nv_lshlrev_b32 v6, 6, v3\nv_add_u32 v{vWM}, v{vWM}, v6')
        P(f's_mul_i32 s{sT3}, s{sJ}, 56\ns_lshl_b32 s{sT2}, s{sW}, 2\ns_add_u32 s{sT3}, s{sT3}, s{sT2}\ns_lshl_b32 s{sT3}, s{sT3}, 13')
        for t in warm_wq(): P(t)
        P(f'v_lshlrev_b32 v{vWM}, 6, v2')
        VM.issue('warm', 4)
    stamp(P, 'pre_dma')
    def blk_code():
        if OPT.get('codepf', '1') == '1':
            P('s_getpc_b64 s[44:45]')
            P.label('L_pc')
            P(f's_lshr_b32 s46, s2, 3\ns_lshl_b32 s46, s46, 12\ns_add_u32 s46, s46, s{sW1K}')
            P(f's_min_u32 s46, s46, {KEND}-L_pc-1024')
            P(f'v_lshlrev_b32 v16, 4, v2\nv_add_u32 v16, s46, v16\nv_mov_b32 v17, s45\nv_add_co_u32 v16, vcc, s44, v16\ns_nop 1\nv_addc_co_u32 v17, vcc, 0, v17, vcc')
            P('global_load_dwordx4 v[20:23], v[16:17], off')
            VM.issue('warm', 1)
    def blk_ktouch():
        if OPT.get('ktouch', '1') == '1':
            P(f's_mov_b32 m0, {DUMMY}\ns_mov_b32 s{sT3}, 0\nbuffer_load_dwordx4 v{vDK}, s[{SRD_K}:{SRD_K+3}], s{sT3} offen nt lds')
            VM.issue('warm', 1)
    def blk_w0():
        for t in dmaWh(0): P(t)
        VM.issue('W0', 7)
    def blk_x():
        P(f'v_lshrrev_b32 v5, 3, v2\nv_and_b32 v6, 7, v2\ns_lshl_b32 s{sT0}, s{sB}, 2\nv_add_u32 v7, s{sT0}, v4\nv_xor_b32 v6, v6, v7\nv_lshlrev_b32 v6, 4, v6')
        P(f'v_mul_u32_u24 v5, 896, v5\nv_add_u32 v5, v5, v6\ns_mul_i32 s{sT0}, s{sW}, {8*896}\nv_add_u32 v5, s{sT0}, v5')
        P(f's_lshl_b32 s{sT1}, s{sB}, 10\ns_mul_i32 s{sT2}, s{sA}, 14336\ns_sub_u32 s{sT2}, 114688, s{sT2}')
        if XSPLIT:
            def piece_block():
                P(f's_add_u32 s47, s45, s{sW1K}')
                for j in range(4):
                    P(f's_add_u32 m0, s47, {j*4096}')
                    P(f's_add_u32 s{sOFF}, s46, {j*32*896}')
                    P(f'buffer_load_dwordx4 v5, s[{SRD_X}:{SRD_X+3}], s{sOFF} offen {NTX} lds')
                P(f's_add_u32 s47, s45, s{sT1}\ns_add_u32 m0, s47, 16384')
                P(f's_add_u32 s{sOFF}, s{sT2}, s46')
                P(f'buffer_load_dwordx4 v5, s[{SRD_X}:{SRD_X+3}], s{sOFF} offen {NTX} lds')
            P(f's_lshr_b32 s44, s2, 3\ns_and_b32 s44, s44, 3')
            P(f's_mul_i32 s45, s44, {XS}\ns_lshl_b32 s46, s44, 7')
            for i in range(4):
                piece_block()
                if i < 3: P(f's_add_u32 s45, s45, {XS}\ns_add_u32 s46, s46, 128\ns_cmp_eq_u32 s46, 512\ns_cselect_b32 s45, 0, s45\ns_cselect_b32 s46, 0, s46')
            VM.issue('x1', 20)
            P(f's_cmp_eq_u32 s44, 3\ns_cselect_b32 s44, 0, s44\ns_add_u32 s44, s44, 4\ns_mul_i32 s61, s44, {XS}\ns_lshl_b32 s62, s44, 7')
            P(f's_mov_b32 s63, s{sT2}\ns_mov_b32 s43, s{sT1}\nv_mov_b32 v18, v5')
            X2 = []
            for i in range(3):
                X2.append(f's_add_u32 s47, s61, s{sW1K}')
                for j in range(4):
                    X2 += [f's_add_u32 m0, s47, {j*4096}', f's_add_u32 s{sOFF}, s62, {j*32*896}', f'buffer_load_dwordx4 v18, s[{SRD_X}:{SRD_X+3}], s{sOFF} offen {NTX} lds']
                X2 += [f's_add_u32 s47, s61, s43', 's_add_u32 m0, s47, 16384', f's_add_u32 s{sOFF}, s63, s62', f'buffer_load_dwordx4 v18, s[{SRD_X}:{SRD_X+3}], s{sOFF} offen {NTX} lds']
                if i < 2: X2 += [f's_add_u32 s61, s61, {XS}', 's_add_u32 s62, s62, 128', 's_cmp_eq_u32 s62, 896\ns_cselect_b32 s61, ' + str(4*XS) + ', s61\ns_cselect_b32 s62, 512, s62']
            X2L.extend(X2)
            if not XDEFER:
                for t in X2: P(t)
                VM.issue('x2', 15)
        elif OPT.get('xrot', '1') == '1':
            P(f's_lshr_b32 s44, s2, 3\ns_and_b32 s44, s44, 3\ns_lshl_b32 s44, s44, 1')
            P(f's_mul_i32 s45, s44, {XS}\ns_lshl_b32 s46, s44, 7')
            for i in range(7):
                P(f's_add_u32 s47, s45, s{sW1K}')
                for j in range(4):
                    P(f's_add_u32 m0, s47, {j*4096}')
                    P(f's_add_u32 s{sOFF}, s46, {j*32*896}')
                    P(f'buffer_load_dwordx4 v5, s[{SRD_X}:{SRD_X+3}], s{sOFF} offen {NTX} lds')
                if XNODUP: P(f's_cmp_lg_u32 s{sA}, 0\ns_cbranch_scc1 L_xskip{i}')
                P(f's_add_u32 s47, s45, s{sT1}\ns_add_u32 m0, s47, 16384')
                P(f's_add_u32 s{sOFF}, s{sT2}, s46')
                P(f'buffer_load_dwordx4 v5, s[{SRD_X}:{SRD_X+3}], s{sOFF} offen {NTX} lds')
                if XNODUP: P.label(f'L_xskip{i}')
                if i < 6:
                    P(f's_add_u32 s45, s45, {XS}\ns_add_u32 s46, s46, 128\ns_cmp_eq_u32 s46, 896\ns_cselect_b32 s45, 0, s45\ns_cselect_b32 s46, 0, s46')
        else:
            for cb7 in range(7):
                for j in range(4):
                    P(f's_add_u32 m0, s{sW1K}, {cb7*XS + j*4096}')
                    P(f's_mov_b32 s{sOFF}, {j*32*896 + cb7*128}')
                    P(f'buffer_load_dwordx4 v5, s[{SRD_X}:{SRD_X+3}], s{sOFF} offen {NTX} lds')
                P(f's_add_u32 m0, s{sT1}, {cb7*XS + 16384}')
                P(f's_add_u32 s{sOFF}, s{sT2}, {cb7*128}')
                P(f'buffer_load_dwordx4 v5, s[{SRD_X}:{SRD_X+3}], s{sOFF} offen {NTX} lds')
        if not XSPLIT: VM.issue('x', 35)
    def blk_wwarm():
        P(f's_lshl_b32 s44, s{sJ}, 2\ns_add_u32 s44, s44, s{sW}\ns_min_u32 s44, s44, 27')
        P(f's_sub_u32 s44, s44, s{sW}\ns_lshl_b32 s44, s44, 16')
        P(f's_mov_b32 m0, {DUMMY}')
        for h in (1, 2, 3):
            g_, p = h >> 1, h & 1
            P(f's_add_u32 s45, s44, {p*224*8192 + (g_ >> 2)*512 + (g_ & 3)*128}')
            P(f'buffer_load_dwordx4 v{vDW}, s[{SRD_WQ}:{SRD_WQ+3}], s45 offen {NTW} lds')
        VM.issue('warm', 3)
    for nm in OPT.get('order', 'wxv' if OPT.get('codefirst', '1') == '1' else 'wxcv'):
        {'c': blk_code, 'k': blk_ktouch, 'w': blk_w0, 'x': blk_x, 'v': blk_wwarm}[nm]()
    stamp(P, 'x_issued')
    P(f'v_lshrrev_b32 v6, 1, v3\nv_xor_b32 v6, v6, v4\nv_lshlrev_b32 v6, 4, v6\nv_lshlrev_b32 v7, 7, v3\nv_add_u32 v6, v6, v7')
    P(f's_lshl_b32 s{sT0}, s{sW}, 12\nv_add_u32 v8, s{sT0}, v6\nv_xor_b32 v9, 64, v8')
    P(f'v_add_u32 v10, 16384, v6\nv_xor_b32 v11, 64, v10')
    for r in (8, 9, 10, 11): P(f'v_add_u32 v{r+4}, {3*XS}, v{r}')
    for u in range(4): P(f'v_add_u32 v{vW2[u]}, {WS0}, v{vW[u]}')
    P(f's_waitcnt vmcnt({VM.need(["x", "x1", "W0"])})\ns_barrier')
    stamp(P, 'x_landed')
    for ks in range(8 if XSPLIT else 14):
        cb7 = ks >> 1; hi = 4 if cb7 >= 3 else 0; base = (cb7 - (3 if hi else 0)) * XS
        for qt in range(2):
            P(f'ds_read_b128 a[{xa(qt,ks)}:{xa(qt,ks)+3}], v{8+(ks&1)+hi} offset:{base + qt*2048}')
        P(f'ds_read_b128 a[{x9a(ks)}:{x9a(ks)+3}], v{10+(ks&1)+hi} offset:{base}')
        if ks % 4 == 3: P('s_waitcnt lgkmcnt(3)')
    P('s_waitcnt lgkmcnt(0)\ns_barrier')
    if XSPLIT and XDEFER == 1:
        for t in X2L: P(t)
        VM.issue('x2', 15)
    EARLY = OPT.get('early', '1') == '1'
    if not EARLY:
        for h in (1, 2):
            for t in dmaWh(h): P(t)
            VM.issue(f'W{h}', 7)
        for t in set_off(sKV, 'V', 0): P(t)
        for t in dmaKV('V', sKV, 3): P(t)
        VM.issue('V0', 4)
    stamp(P, 'first_data')
    for h in range(16):
        g, p = h >> 1, h & 1
        A = vACC[g & 1]; A9 = vACC9[g & 1]
        items = []; entry = []
        for ksl in range(7):
            ks = 7 * p + ksl
            for up in range(4):
                k = len(items)
                kk = ksl * 4 + up
                regs = PENTRY[kk] if (h >= (4 if XSPLIT else E0) and kk < NPE) else None
                f = w_frag(h, ksl, up, regs)
                if regs is not None: entry.append(f)
                xf = []
                if XSPLIT and h == 1 and ks >= 8 and up == 0:
                    cb7 = ks >> 1; base = (cb7 - 3) * XS
                    xf = [Frag('b128', 12 + (ks & 1), base + qt * 2048, regs=xa(qt, ks), acc=True) for qt in range(2)]
                    xf.append(Frag('b128', 14 + (ks & 1), base, regs=x9a(ks), acc=True))
                def mf(f=f, ks=ks, up=up):
                    r = f.regs; o = []
                    for qt in range(2):
                        t = A + (up * 2 + qt) * 4
                        c = '0' if ks == 0 else f'v[{t}:{t+3}]'
                        o.append(f'{MF} v[{t}:{t+3}], {AF}[{r}:{r+3}], a[{xa(qt,ks)}:{xa(qt,ks)+3}], {c}')
                    if up == 0:
                        c = '0' if ks == 0 else f'v[{A9}:{A9+3}]'
                        o.append(f'{MF} v[{A9}:{A9+3}], {AF}[{r}:{r+3}], a[{x9a(ks)}:{x9a(ks)+3}], {c}')
                    return o
                items.append(Item(xf + [f], mf, 3 if up == 0 else 2))
        st, NM = mstarts(items)
        tasks = []
        L = []; tags = []
        if XSPLIT and h == 0:
            L = dmaWh(1); tags = [('W1', 7)]
            if XDEFER == 2: L = X2L + L; tags = [('x2', 15), ('W1', 7)]
        elif XSPLIT and h == 1: L = dmaWh(2) + dmaWh(4); tags = [('W2', 7), ('W4', 7)]
        elif XSPLIT and h == 2:
            L = dmaWh(3) + dmaWh(5) + set_off(sKV, 'V', 0) + dmaKV('V', sKV, 3); tags = [('W3', 7), ('W5', 7), ('V0', 4)]
        elif h == 0 and EARLY:
            L = dmaWh(1) + dmaWh(2) + dmaWh(3) + set_off(sKV, 'V', 0) + dmaKV('V', sKV, 3)
            tags = [('W1', 7), ('W2', 7), ('W3', 7), ('V0', 4)]
        elif h + 3 < 16: L = dmaWh(h + 3); tags = [(f'W{h+3}', 7)]
        elif h == 13: L = set_off(sKV, 'K', 0) + dmaKV('K', sKV, 0); tags = [('K0', 4)]
        elif h == 14:
            L = set_off(sKV, 'K', 1) + dmaKV('K', sKV, 1) + set_off(sKV, 'K', 2) + dmaKV('K', sKV, 2); tags = [('K1', 4), ('K2', 4)]
        elif h == 15:
            L = set_off(sKV, 'V', 1) + dmaKV('V', sKV, 0) + set_off(sKV, 'K', 3) + dmaKV('K', sKV, 3); tags = [('V1', 4), ('K3', 4)]
        PF = OPT.get('pf', '')
        if PF:
            seq = []
            for tk in PF.split(','):
                which, tile = tk[0], int(tk[1:])
                seq += [(which, tile, k) for k in range(4)]
            per = int(OPT.get('pfper', 2)); h0 = int(OPT.get('pfh0', 1))
            mine = seq[(h - h0) * per:(h - h0 + 1) * per] if h >= h0 else []
            for which, tile, k in mine:
                so = tile * 16384 + (16384 if which == 'V' else 0) + k * 1024
                sr = SRD_K if which == 'K' else SRD_V
                L = L + [f's_add_u32 s{sT3}, s{sW4K}, {so}', f's_mov_b32 m0, {DUMMY}',
                         f'buffer_load_dwordx4 v{vWM}, s[{sr}:{sr+3}], s{sT3} offen {OPT.get("pfpol", "").replace("none", "")} lds']
            if mine: tags = tags + [('warm', len(mine))]
        if OPT.get('qnodma'): L = []
        ch = chain(L, sepfn=sepb)
        if XSPLIT and h == 0 and XDEFER == 2:
            tasks += spread(ch, 0, NM - 20)
        elif XSPLIT and h in (0, 1, 2):
            tasks += spread(ch[:15], 0, 20) + (spread(ch[15:], 24, NM - 8) if len(ch) > 15 else [])
        else:
            tasks += spread(ch, 0 if h == 0 else 1, NM - 12)
        for tg, n_ in tags: VM.issue(tg, n_)
        if h == 1 and not XSPLIT:
            tasks += [Task(f'v_add_u32 v{vW2[u]}, {2*HS}, v{vW[u]}', 4, 30) for u in range(4)]
        if h == 3 and XSPLIT:
            for u in range(4): P(f'v_add_u32 v{vW2[u]}, {2*HS}, v{vW[u]}')
        if g >= 1 and not OPT.get('qnoconv'):
            cv = conv_tasks(g - 1, NM)
            half = len(cv) * 0
            nblk = 12
            blk = 16
            part = cv[:2 * blk] if p == 0 else cv[2 * blk:]
            for k, t in enumerate(part):
                t.ready = 2; t.due = 6 + (NM - 14) * k // len(part)
            tasks += part
        exitf = []
        if (3 if XSPLIT else E0 - 1) <= h < 15:
            exitf = [w_frag(h + 1, k // 4, k % 4, PENTRY[k]) for k in range(NPE)]
        seg = OPT.get('seg') == f'q{h}'
        if seg:
            stamp(P, 'seg0'); P('s_mov_b32 s47, 50'); P.label('L_seg'); i0 = len(P.lines)
        lgq, _, _ = schedule(P, items, tasks, entry=entry, exitf=exitf, stats=stats, lead=LEADP, urgent=URGP, burst=(0 if entry else 5), age=AGEP, xstep=2)
        if seg:
            drop = tuple(x for x in OPT.get('segdrop', '').split(',') if x)
            body = [l for l in P.lines[i0:] if not (drop and l.startswith(drop))]
            del P.lines[i0:]; P.lines.extend(body)
            P('s_waitcnt vmcnt(9) lgkmcnt(10)\ns_barrier\ns_sub_u32 s47, s47, 1\ns_cmp_lg_u32 s47, 0\ns_cbranch_scc1 L_seg')
            stamp(P, 'seg1'); stamp(P, 'out_done'); stamp_flush(P); P('s_endpgm')
            return True
        need = [f'W{h+2}'] if h + 2 < 16 else []
        if h == 0: need = ['W1', 'W2'] if E0 == 2 else ['W1']
        if h == 1 and E0 == 3 and not XSPLIT: need = ['W2', 'W3']
        if XSPLIT and h < 3: need = [['W1', 'x2'], ['W2'], ['W3', 'W4']][h]
        if h == 15: need = ['K0', 'K1']
        n_ = VM.need(need) if need else None
        w_ = []
        if n_ is not None and not NOWAITQ: w_.append(f'vmcnt({n_})')
        w_.append(f'lgkmcnt({final_lgkm(lgq, exitf)})')
        P('s_waitcnt ' + ' '.join(w_) + '\ns_barrier')
        stamp(P, f'half{h}') if (PROF and (h in (1, 7, 12, 15) or PROF != '1')) else None
    for t in set_off(sKV, 'V', 2): P(t)
    for t in dmaKV('V', sKV, 1): P(t)
    VM.issue('V2', 4)
    P('s_nop 7')
    for t in conv_tasks(7): P(t)
    P('s_waitcnt lgkmcnt(0)\ns_barrier')

LEADP = int(OPT.get('leadp', 16)); URGP = int(OPT.get('urgp', 12)); AGEP = int(OPT.get('agep', 11)); AGE = int(OPT.get('age', 8))

def Sr(slot, qt): return slot + qt * 4
def Oa(cb, up, qt): return ((cb * 4 + up) * 4 + qt) * 4
def O9r(cb, q9): return vO9 + (cb * 2 + q9) * 4

def sm_tasks(src, dst2, l, ready, due, after=(), prio=0):
    ex = [Task(f'v_exp_f32 v{src+r}, v{src+r}', ready, due, prio=prio + r) for r in range(4)]
    ad = [Task(f'v_add_f32 v{l}, v{l}, v{src+r}', ready, due, gdeps=[ex[r]], prio=prio + 4 + r) for r in range(4)]
    c0 = Task(f'v_cvt_pk_bf16_f32 v{dst2}, v{src}, v{src+1}', ready, due, deps=[ad[0], ad[1]] + list(after), gdeps=[ex[0], ex[1]], prio=prio + 8)
    c1 = Task(f'v_cvt_pk_bf16_f32 v{dst2+1}, v{src+2}, v{src+3}', ready, due, deps=[ad[1], ad[2], ad[3], c0] + list(after), gdeps=[ex[2], ex[3]], prio=prio + 9)
    return ex + ad + [c0, c1], [c0, c1]

KENTRY = [POOL[0], POOL[1], POOL[2]]
def k_frag(kslot, kt, sp, regs=None, pool=None):
    return Frag('b128', vK[sp & 1], KB + kslot * 16384 + (sp >> 1) * 4096 + kt * 2048, pool=pool, regs=regs)

def q9_frag(sp, regs=None, pool=None):
    return Frag('b128', vQ9[sp & 1], (sp >> 1) * 2048, pool=pool, regs=regs)

def phaseA_items(i, kt9, poolA, kslot=None, S0=None, noentry=False):
    if kslot is None: kslot = (i + 1) & 3
    if S0 is None: S0 = vX[(i + 1) & 1]
    items = []
    cnt = 0
    entry = []
    for kt in range(2):
        S = S0 if kt == 0 else vY
        for sp in range(8):
            regs = KENTRY[cnt] if (cnt < len(KENTRY) and not noentry) else None
            fk = k_frag(kslot, kt, sp, regs=regs, pool=poolA)
            if regs is not None: entry.append(fk)
            cnt += 1
            def mf(fk=fk, S=S, sp=sp):
                r = fk.regs; o = []
                for qt in range(4):
                    t = Sr(S, qt); c = '0' if sp == 0 else f'v[{t}:{t+3}]'
                    o.append(f'{MF} v[{t}:{t+3}], v[{r}:{r+3}], v[{Qr(qt,sp)}:{Qr(qt,sp)+3}], {c}')
                return o
            items.append(Item([fk], mf, 4, tag=('qk', kt, sp)))
            if kt == kt9:
                f9 = q9_frag(sp, regs=(POOL[3] if (kt9 == 0 and sp == 0 and not noentry) else None), pool=poolA)
                if f9.regs is not None: entry.append(f9)
                def mf9(fk=fk, f9=f9, sp=sp):
                    c = '0' if sp == 0 else f'v[{vS9}:{vS9+3}]'
                    return [f'{MF} v[{vS9}:{vS9+3}], v[{fk.regs}:{fk.regs+3}], v[{f9.regs}:{f9.regs+3}], {c}']
                items.append(Item([f9], mf9, 1, tag=('qk9', sp), hold=[fk]))
    return items, entry

def exit_frags(i, kt9):
    nk = (i + 2) & 3
    L = [k_frag(nk, 0, 0, regs=KENTRY[0])]
    if kt9 == 0: L.append(q9_frag(0, regs=POOL[3]))
    L += [k_frag(nk, 0, sp, regs=KENTRY[sp]) for sp in (1, 2)]
    return L

def phaseB_items(i, zero=False):
    vslot = (i + 3) & 3
    Pc = vX[i & 1]
    buf = i & 1
    items = []
    p9 = [Frag('b128', vP9r, buf * 2048 + q9 * 1024, regs=vP9f + 4 * q9) for q9 in range(2)]
    for up in (1, 0, 2, 3):
        for cb in range(4):
            imm = vslot * 16384 + cb * 4096
            fv = Frag('tr', vV[up], imm, pool=POOL, imm2=imm + 2048)
            fr = [fv]
            if up == 0 and cb == 0: fr = p9 + [fv]
            def mf(fv=fv, up=up, cb=cb):
                r = fv.regs; o = []
                for qt in range(4):
                    a = Oa(cb, up, qt); c = '0' if zero else f'a[{a}:{a+3}]'
                    o.append(f'{MF} a[{a}:{a+3}], v[{r}:{r+3}], v[{Sr(Pc,qt)}:{Sr(Pc,qt)+3}], {c}')
                if up == 0:
                    for q9 in range(2):
                        t = O9r(cb, q9); c = '0' if zero else f'v[{t}:{t+3}]'
                        o.insert(2 + 2 * q9 - (0), f'{MF} v[{t}:{t+3}], v[{r}:{r+3}], v[{vP9f+4*q9}:{vP9f+4*q9+3}], {c}')
                return o
            items.append(Item(fr, mf, 6 if up == 0 else 4, tag=('pv', up, cb), hold=(p9 if (up == 0 and cb > 0) else [])))
    return items

def softmax_tasks(i, kt9, k1start, NM, a_end, skip1=False):
    S0 = vX[(i + 1) & 1]
    T = []
    r0 = k1start + 2
    r1 = a_end + 2
    due = NM - 3
    last0 = []
    for qt in range(4):
        t, l = sm_tasks(Sr(S0, qt), Sr(S0, qt), vL[qt], r0 + qt, due - 40, prio=qt * 10); T += t; last0.append(l)
    t9, l9 = sm_tasks(vS9, vS9, vL9, r0 if kt9 == 0 else r1, due - 12, prio=45)
    T += t9
    T.append(Task(f'ds_write_b64 v{vP9w}, v[{vS9}:{vS9+1}] offset:{((i+1)&1)*2048}', r0, due - 8, deps=l9, prio=56))
    if skip1: return T
    for qt in range(4):
        t, l = sm_tasks(Sr(vY, qt), Sr(S0, qt) + 2, vL[qt], r1 + qt, due, after=last0[qt], prio=60 + qt * 10); T += t
    return T

def order_entry(entry):
    return entry

def gen_iter(P, i, kt9, stats, dma=True, zero=False):
    if OPT.get('nodma'): dma = False
    poolA = POOL + [vP9f, vP9f + 4]
    A, entry = phaseA_items(i, kt9, poolA)
    B = phaseB_items(i, zero)
    items = A + B
    st, NM = mstarts(items)
    a_end = st[len(A)]
    k1 = st[[k for k, it in enumerate(A) if it.tag == ('qk', 1, 0)][0]]
    tasks = softmax_tasks(i, kt9, k1, NM, a_end)
    if OPT.get('nosm'): tasks = []
    late = []
    if zero and SM1LATE:
        for qt in range(4):
            t, l = sm_tasks(Sr(vY, qt), Sr(vX[0], qt) + 2, vL[qt], 0, k1 - 4, prio=qt * 10); late += t
        for k, t in enumerate(sorted(late, key=lambda t: t.prio)): t.due = 2 + (k1 - 8) * k // len(late)
        tasks += late
    if dma:
        if ROT:
            upd = [f's_add_u32 s{sVV}, s{sKV}, 16384', f's_add_u32 s{sTK}, s{sTK}, 1', f's_lshl_b32 s{sT3}, s{sTK}, 14', f's_add_u32 s{sT3}, s{sT3}, s{sROT}',
                   f's_and_b32 s{sT3}, s{sT3}, 0x7ffff', f's_cmp_lt_u32 s{sTK}, 32\ns_cselect_b32 s{sKV}, s{sT3}, 0x40000000']
            L = dmaKV('K', sKV, i & 3) + dmaKV('V', sVV, (i + 3 + 3) & 3) + upd
        else:
            L = dmaKV('K', sKV, i & 3) + dmaKV('V', sKV, (i + 3 + 3) & 3) + [f's_add_u32 s{sKV}, s{sKV}, {0 if OPT.get("l2dma") else 16384}']
        ch = chain(L, ready=0, due=NM - 4, sepfn=lambda t: t.startswith('buffer'))
        sp = int(OPT.get('dmasp', 16)); d0 = int(OPT.get('dma0', 2))
        pos = [d0 + j * sp for j in range(8)]
        if OPT.get('dmapos'): pos = [int(x) for x in OPT['dmapos'].split(',')]
        nb = 0
        for k, t in enumerate(ch):
            j = min(nb, 7)
            t.ready = max(0, pos[j] - (0 if t.text.startswith('buffer') else 2)) if nb < 8 else pos[7] + 2
            t.due = min(pos[j] + 6 + (2 * (k - len(ch) + 7) if nb >= 8 else 0), NM - 4)
            if t.text.startswith('buffer'): nb += 1
        tasks += ch
        if WOWARM:
            wm = chain([f's_add_u32 s{sWO}, s{sWO}, 1024', f's_mov_b32 m0, {DUMMY}', f'buffer_load_dwordx4 v{vLIN}, s[{SRD_WO}:{SRD_WO+3}], s{sWO} offen lds'],
                       ready=NM - 14, due=NM - 6, sepfn=lambda t: t.startswith('buffer'), first_deps=[[t for t in ch if t.text.startswith('buffer')][-1]])
            tasks += wm
    exitf = exit_frags(i, kt9)
    lgq, _, _ = schedule(P, items, tasks, entry=entry, exitf=exitf, stats=stats, lead=LEAD, urgent=URG, age=AGE)
    assert all(t.at < k1 - 1 for t in late), [(t.text, t.at, k1) for t in late if t.at >= k1 - 1]
    ne = final_lgkm(lgq, exitf)
    if OPT.get('nowaita'): P(f's_waitcnt lgkmcnt({ne})')
    else: P(f's_waitcnt vmcnt({((13 if zero else 14) if WOWARM else 12) + KRELAX}) lgkmcnt({ne})')
    if not OPT.get('nobar'): P('s_barrier')

LEAD = int(OPT.get('lead', 16)); URG = int(OPT.get('urg', 10))
SM1LATE = OPT.get('sm1late', '1') == '1'
KRELAX = int(OPT.get('krelax', 2))
WOWARM = OPT.get('wowarm', '1') == '1'
sWO = 42; vLIN = 253; sWOB = 43
WOLATE = int(OPT.get('wolate', 4))
def attn_prologue(P, kt9, stats):
    i = -1
    poolA = POOL + [vP9f, vP9f + 4]
    A, entry = phaseA_items(i, kt9, poolA)
    st, NM = mstarts(A)
    k1 = st[[k for k, it in enumerate(A) if it.tag == ('qk', 1, 0)][0]]
    tasks = softmax_tasks(i, kt9, k1, NM + 200, NM + 20, skip1=SM1LATE)
    lgq, _, _ = schedule(P, A, tasks, entry=[], exitf=[], stats=stats, lead=LEAD, urgent=URG, burst=3)
    ex = exit_frags(i, kt9)
    for f in ex:
        for t in f.instrs(): P(t)
    P(f's_waitcnt vmcnt({12 + KRELAX}) lgkmcnt({len(ex)})')
    P('s_barrier')

def attention(P, stats):
    P.lines.append('; ---- attention: prologue QK(0), then per iteration QK(i+1) | PV(i) with softmax(i+1) in the MFMA gaps (two code versions by wave parity)')
    if ROT:
        for t in set_off(sKV, 'K', 4) + set_off(sVV, 'V', 3): P(t)
        P(f's_mov_b32 s{sTK}, 4')
    else: P(f's_mov_b32 s{sKV}, {4*16384}')
    for qt in range(4): P(f'v_mov_b32 v{vL[qt]}, 0')
    P(f'v_mov_b32 v{vL9}, 0')
    if WOWARM:
        WO0 = int(OPT.get('wo0', 12))
        P(f'v_mbcnt_lo_u32_b32 v{vLIN}, -1, 0\nv_mbcnt_hi_u32_b32 v{vLIN}, -1, v{vLIN}\nv_lshlrev_b32 v{vLIN}, 4, v{vLIN}')
        P(f's_mul_i32 s{sWO}, s{sJ}, 57344\ns_mul_i32 s{sT0}, s{sW}, 14336\ns_add_u32 s{sWO}, s{sWO}, s{sT0}')
        P(f's_sub_u32 s{sWO}, s{sWO}, 1024')
        if WOLATE: P(f's_mov_b32 s{sWOB}, s{sWO}\ns_mov_b32 s{sWO}, 0x40000000')
    P(f's_cmp_eq_u32 s{sB}, 1\ns_cbranch_scc1 L_attn1')
    for kt9 in range(2):
        if kt9 == 1: P.label('L_attn1')
        attn_prologue(P, kt9, stats)
        if kt9 == 0: stamp(P, 'attn_prologue_done')
        P(f's_mov_b32 s{sCNT}, 8')
        gen_iter(P, 0, kt9, stats, zero=True)
        P(f's_branch L_body1_{kt9}')
        P('.p2align 3')
        P.label(f'L_loop{kt9}')
        if WOWARM and WOLATE: P(f's_cmp_eq_u32 s{sCNT}, {WOLATE}\ns_cselect_b32 s{sWO}, s{sWOB}, s{sWO}')
        if OPT.get('tripstamp') and kt9 == 0:
            P(f's_cmp_lg_u32 s{sW}, 0\ns_cbranch_scc1 L_nots\ns_memtime s[90:91]\ns_load_dwordx2 s[92:93], s[0:1], 96\ns_waitcnt lgkmcnt(0)')
            P(f's_lshl_b32 s94, s2, 6\ns_lshl_b32 s95, s{sCNT}, 2\ns_add_u32 s94, s94, s95\ns_add_u32 s94, s94, {210*1024*1024}')
            P(f'v_mov_b32 v254, s94\nv_mov_b32 v255, s90\nglobal_store_dword v254, v255, s[92:93]')
            P.label('L_nots')
        if OPT.get('codepf2', '1') == '1' and not WCOL:
            P(f's_cmp_lg_u32 s{sCNT}, {OPT.get("pf2at", 2)}\ns_cbranch_scc1 L_nopf{kt9}')
            P('s_getpc_b64 s[44:45]')
            P.label(f'L_pc2_{kt9}')
            P(f's_sub_u32 s44, s44, L_pc2_{kt9}-L_pc\ns_subb_u32 s45, s45, 0')
            P(f's_lshr_b32 s46, s2, 3\ns_lshl_b32 s46, s46, 12\ns_add_u32 s46, s46, s{sW1K}\ns_min_u32 s46, s46, {KEND}-L_pc-1024')
            P(f'v_add_u32 v254, s46, v{vLIN}\nv_mov_b32 v255, s45\nv_add_co_u32 v254, vcc, s44, v254\ns_nop 1\nv_addc_co_u32 v255, vcc, 0, v255, vcc')
            P(f's_mov_b32 m0, {DUMMY}\ns_nop 0\nglobal_load_lds_dwordx4 v[254:255], off')
            P.label(f'L_nopf{kt9}')
        for i in range(4):
            if i == 1: P.label(f'L_body1_{kt9}')
            if i == 3:
                P(f's_sub_u32 s{sCNT}, s{sCNT}, 1\ns_cmp_eq_u32 s{sCNT}, 0\ns_cbranch_scc1 L_tail')
            gen_iter(P, i, kt9, stats)
        P(f's_branch L_loop{kt9}')

vA = [236, 237, 242, 243]
vDO = 253; vDOc = 252; vST = 254; vST9 = 255
sOJ = sWJ
LO_F = 0x30800000
HI_F = 0x53800000
def OP(qt, s): return vQ + (qt * 8 + s) * 4

def lane_recompute(P, lane, n, g):
    P(f'v_mbcnt_lo_u32_b32 v{lane}, -1, 0\nv_mbcnt_hi_u32_b32 v{lane}, -1, v{lane}')
    P(f'v_and_b32 v{n}, 15, v{lane}\nv_lshrrev_b32 v{g}, 4, v{lane}')

def reduce4(P, r, t, op='v_add_f32'):
    P(f'v_mov_b32 v{t}, v{r}\ns_nop 1\nv_permlane32_swap_b32 v{t}, v{r}\ns_nop 1\n{op} v{r}, v{r}, v{t}')
    P(f'v_mov_b32 v{t}, v{r}\ns_nop 1\nv_permlane16_swap_b32 v{t}, v{r}\ns_nop 1\n{op} v{r}, v{r}, v{t}')

NTO = OPT.get('nto', '').replace('none', '')

vR9 = [206, 207]
def tail_pre(P):
    lane, n, g = 200, 201, 202
    P.lines.append('; ---- loop exit: run-time guard on the row sums (fallback: L_slow), tile-9 row sums, constants of the out projection')
    P.label('L_tail')
    P('s_waitcnt lgkmcnt(0)')
    stamp(P, 'loop_done')
    lane_recompute(P, lane, n, g)
    P(f's_mov_b32 s{sT0}, {LO_F}\ns_mov_b32 s{sT1}, {HI_F}\ns_mov_b64 s[44:45], -1')
    for r in vL + [vL9]:
        P(f'v_cmp_le_f32 s[46:47], s{sT0}, v{r}\nv_cmp_ge_f32 vcc, s{sT1}, v{r}\ns_nop 1\ns_and_b64 s[44:45], s[44:45], s[46:47]\ns_and_b64 s[44:45], s[44:45], vcc')
    P(f's_cmp_eq_u64 s[44:45], -1\ns_cselect_b32 s{sT2}, 0, 1')
    if OPT.get('forceslow'): P(f's_mov_b32 s{sT2}, 1')
    reduce4(P, vL9, 203)
    P(f'v_lshlrev_b32 v203, 2, v{lane}\ns_lshl_b32 s{sT0}, s{sW}, 8\ns_add_u32 s{sT0}, s{sT0}, {SCR}\nv_add_u32 v203, s{sT0}, v203')
    P(f'v_mov_b32 v204, s{sT2}\nds_write_b32 v203, v{vL9}\nds_write_b32 v203, v204 offset:1024')
    P(f'v_lshrrev_b32 v203, 3, v{lane}\nv_and_b32 v204, 7, v{lane}\nv_and_b32 v205, 6, v203\nv_xor_b32 v204, v204, v205\nv_lshlrev_b32 v204, 4, v204')
    P(f'v_mul_u32_u24 v203, 896, v203\nv_add_u32 v203, v203, v204\ns_mul_i32 s{sT0}, s{sW}, {8*896}\nv_add_u32 v{vDO}, s{sT0}, v203')
    for k in range(8): P(f's_mov_b32 s{sOJ[k]}, {k*32*896}')
    P(f's_mov_b32 s{sST1}, 0\ns_mov_b32 s{sST2}, 0')
    if FUSE:
        P('s_load_dwordx2 s[62:63], s[0:1], 88\ns_waitcnt lgkmcnt(0)')
        srd(P, S_DBG, 62, 63, 256)
    P('s_waitcnt vmcnt(0) lgkmcnt(0)\ns_barrier')
    P(f'v_lshlrev_b32 v203, 2, v{n}\nv_add_u32 v203, {SCR}, v203')
    for k in range(4): P(f'ds_read_b32 v{192+k}, v203 offset:{k*256}')
    for k in range(4): P(f'ds_read_b32 v{196+k}, v203 offset:{1024+k*256}')
    P('s_waitcnt lgkmcnt(0)')
    P('v_or_b32 v196, v196, v197\nv_or_b32 v198, v198, v199\nv_or_b32 v196, v196, v198\ns_nop 0\nv_readfirstlane_b32 s43, v196')
    P(f'v_add_f32 v{vR9[0]}, v192, v193\nv_add_f32 v{vR9[1]}, v194, v195')
    P(f's_cmp_eq_u32 s43, 0\ns_cbranch_scc1 L_fast_ok\ns_cmp_lg_u32 s{sSLOW}, 0\ns_cbranch_scc1 L_fast_ok\ns_branch L_slow')
    P.label('L_fast_ok')
    P(f'v_rcp_f32 v{vR9[0]}, v{vR9[0]}\nv_rcp_f32 v{vR9[1]}, v{vR9[1]}')
    reduce4_multi(P, vL, [192, 193, 194, 195])
    for qt in range(4): P(f'v_rcp_f32 v{vL[qt]}, v{vL[qt]}')
    for u in range(4): P(f'v_subrev_u32 v{vA[u]}, 65536, v{vV[u]}')
    P(f'v_lshlrev_b32 v203, 4, v{lane}\ns_lshl_b32 s{sT0}, s{sW}, 12\nv_add_u32 v{vST}, s{sT0}, v203')
    P(f'v_lshlrev_b32 v203, 3, v{lane}\ns_lshl_b32 s{sT0}, s{sW}, 9\ns_add_u32 s{sT1}, s{sT0}, 114688\nv_add_u32 v{vST9}, s{sT1}, v203')
    stamp(P, 'tail_pre')
    P(f's_add_u32 s{sT0}, s{sT0}, {Q9B}\nv_add_u32 v246, s{sT0}, v203\nv_add_u32 v247, {Q9B}, v203')
sSLOW = 49

def norm_chain(w, qts, order, temps):
    L = []
    k = 0
    for (cb, up) in order:
        for qt in qts:
            a = Oa(cb, up, qt); t = temps[k % len(temps)]; k += 1
            u = up ^ w
            d = OP(qt, 2 * cb + (u >> 1)) + (u & 1) * 2
            L.append([f'v_accvgpr_read_b32 v{t+r}, a{a+r}' for r in range(4)] + [f'v_mul_f32 v{t+r}, v{t+r}, v{vL[qt]}' for r in range(4)]
                     + [f'v_cvt_pk_bf16_f32 v{d}, v{t}, v{t+1}', f'v_cvt_pk_bf16_f32 v{d+1}, v{t+2}, v{t+3}'])
    return L

def o_frag(j, cb, v, up, regs=None):
    sl = j & 3
    a = vA[up] if sl < 2 else vV[up]
    imm = (sl & 1) * 32768 + cb * 8192 + v * 4096
    return Frag('tr', a, imm, pool=PPOOL, imm2=imm + 2048, regs=regs, acc=APOOL)

STF = OPT.get('stf', 'sc1').replace('none', '')
class B9Frag(Frag):
    def instrs(s):
        r = s.regs - 1000
        return [f'ds_read_b64 a[{r}:{r+1}], v247 offset:{s.imm}', f'ds_read_b64 a[{r+2}:{r+3}], v247 offset:{s.imm+512}']

sST1 = 44; sST2 = 45
def reduce4_multi(P, regs, temps, op='v_add_f32'):
    for swap in ('v_permlane32_swap_b32', 'v_permlane16_swap_b32'):
        for r, t in zip(regs, temps): P(f'v_mov_b32 v{t}, v{r}')
        for r, t in zip(regs, temps): P(f'{swap} v{t}, v{r}')
        for r, t in zip(regs, temps): P(f'{op} v{r}, v{r}, v{t}')

def dmaOh(j, rolled=False):
    cg, hp = j >> 1, j & 1
    base = (j & 3) * 32768
    L = [f'v_add_u32 v{vDOc}, {hp*256*896 + cg*128}, v{vDO}']
    for k in range(8):
        L.append(f's_add_u32 m0, s{sW1K}, {base + k*4096}')
        L.append(f'buffer_load_dwordx4 v{vDOc}, s[{SRD_WO}:{SRD_WO+3}], s{sOJ[k]} offen {NTO} lds')
    return L

def store_lists(par):
    A = vACC[par]; A9 = vACC9[par]
    cv = []; st = []
    for qt in range(2):
        for vp in range(2):
            t = A + ((2 * vp) * 2 + qt) * 4; u = A + ((2 * vp + 1) * 2 + qt) * 4
            cv.append([f'v_cvt_pk_bf16_f32 v{t}, v{t}, v{t+1}', f'v_cvt_pk_bf16_f32 v{t+1}, v{t+2}, v{t+3}',
                       f'v_cvt_pk_bf16_f32 v{t+2}, v{u}, v{u+1}', f'v_cvt_pk_bf16_f32 v{t+3}, v{u+2}, v{u+3}'])
            st.append(f'buffer_store_dwordx4 v[{t}:{t+3}], v{vST}, s[{SRD_WS}:{SRD_WS+3}], s{sST1} offen offset:{(qt*2+vp)*1024} {STF}'.strip())
    cv.append([f'v_cvt_pk_bf16_f32 v{A9}, v{A9}, v{A9+1}', f'v_cvt_pk_bf16_f32 v{A9+1}, v{A9+2}, v{A9+3}'])
    st.append(f'buffer_store_dwordx2 v[{A9}:{A9+1}], v{vST9}, s[{SRD_WS}:{SRD_WS+3}], s{sST2} offen {STF}'.strip())
    return cv, st

def out_half(P, j, stats, vm, extra_tasks=(), emit=True):
    if not emit: P = Prog()
    cg, hp = j >> 1, j & 1
    A = vACC[cg & 1]; A9 = vACC9[cg & 1]
    sepb = lambda t: t.startswith('buffer')
    items = []; entry = []
    has_entry = j != 0
    for cb in range(4):
        for v in range(2):
            for up in range(4):
                k = (cb * 2 + v) * 4 + up
                regs = PENTRY[k] if (has_entry and k < NPE) else None
                f = o_frag(j, cb, v, up, regs)
                if regs is not None: entry.append(f)
                b9f = hp * 8 + 2 * cb + v
                b9 = 16 * (b9f >> 1) + 4 * (b9f & 1)
                z = (hp == 0 and cb == 0 and v == 0)
                def mf(f=f, cb=cb, v=v, up=up, z=z):
                    r = f.regs; o = []
                    for qt in range(2):
                        t = A + (up * 2 + qt) * 4; c = '0' if z else f'v[{t}:{t+3}]'
                        b = OP(2 * hp + qt, 2 * cb + v)
                        o.append(f'{MF} v[{t}:{t+3}], {AF}[{r}:{r+3}], v[{b}:{b+3}], {c}')
                    return o
                items.append(Item([f], mf, 2))
                if up == 0:
                    fr9 = []
                    if cg == 0: fr9 = [B9Frag('b9', 247, (hp * 16 + 4 * cb + 2 * v) * 512, regs=1000 + b9)]
                    def mf9(f=f, z=z, b9=b9):
                        c = '0' if z else f'v[{A9}:{A9+3}]'
                        return [f'{MF} v[{A9}:{A9+3}], {AF}[{f.regs}:{f.regs+3}], a[{b9}:{b9+3}], {c}']
                    items.append(Item(fr9, mf9, 1, hold=[f]))
    st, NM = mstarts(items)
    tasks = list(extra_tasks)
    if j == 0:
        ch = chain(dmaOh(2), sepfn=sepb); spread(ch, 1, NM // 2 - 4)
        for t in ch: t.tag = 'O2'
        ch2 = chain(dmaOh(3), sepfn=sepb, first_deps=[ch[-1]]); spread(ch2, NM // 2, NM - 8)
        for t in ch2: t.tag = 'O3'
        tasks += ch + ch2
    elif not OPT.get('onodma'):
        ch = spread(chain(dmaOh(j + 3), sepfn=sepb), 1, NM - 10)
        for t in ch: t.tag = f'O{j+3}'
        tasks += ch
    if cg >= 1 and not OPT.get('nostore'):
        cvl, stl = store_lists((cg - 1) & 1)
        idx = (0, 1, 4) if hp == 0 else (2, 3)
        pos = [14 + (NM - 22) * q // len(idx) for q in range(len(idx))]
        for q, k in enumerate(idx):
            cv = chain(cvl[k], ready=3, due=pos[q] - 2)
            for z_, t in enumerate(cv): t.due = max(3, pos[q] - 2 * (len(cv) - z_) - 1)
            s_ = Task(stl[k], ready=pos[q], due=pos[q] + 3, gdeps=[cv[-1]]); s_.tag = 'S'
            tasks += cv + [s_]
        if hp == 1:
            tasks += [Task(f's_add_u32 s{sST1}, s{sST1}, 16384', ready=NM - 5, due=NM - 2, deps=[t for t in tasks if getattr(t, 'tag', '') == 'S']),
                      Task(f's_add_u32 s{sST2}, s{sST2}, 2048', ready=NM - 5, due=NM - 2, deps=[t for t in tasks if getattr(t, 'tag', '') == 'S'])]
    exitf = []
    kk = 0
    for cb in range(4):
        for v in range(2):
            for up in range(4):
                if kk < NPE: exitf.append(o_frag(j + 1, cb, v, up, PENTRY[kk]))
                kk += 1
    seg = emit and OPT.get('seg') == f'o{j}'
    log = []
    lgq, _, _ = schedule(P, items, tasks, entry=entry, exitf=exitf, stats=(stats if emit else None), lead=LEADP, urgent=URGP, burst=(0 if entry else 5), age=AGEP, vmlog=log, xstep=2)
    for tg in log: vm.issue(tg, 1)
    need = [f'O{j+2}']
    n_ = vm.need(need)
    w_ = []
    if not OPT.get('onowait'): w_.append(f'vmcnt({n_})')
    w_.append(f'lgkmcnt({final_lgkm(lgq, exitf)})')
    P('s_waitcnt ' + ' '.join(w_) + '\ns_barrier')
    return n_

def tail_and_out(P, stats):
    tail_pre(P)
    import copy
    for w in range(4):
        if w < 3: P(f's_cmp_lg_u32 s{sW}, {w}\ns_cbranch_scc1 L_tw{w+1}')
        vm = VMQ()
        B = phaseB_items(3)
        st, NM = mstarts(B)
        order = [(it.tag[2], it.tag[1]) for it in B]
        fin = {(it.tag[2], it.tag[1]): st[k] + it.nm - 1 for k, it in enumerate(B)}
        tasks = spread(chain(dmaOh(0) + dmaOh(1), sepfn=lambda t: t.startswith('buffer')), 1, NM - 8)
        vm.issue('O0', 8); vm.issue('O1', 8)
        T1 = [160, 164, 168, 172, 192, 196, 200 - 0]
        T1 = [160, 164, 168, 172, 192, 196]
        nc = norm_chain(w, (0, 1), order, T1)
        flat = []; prev = None
        for k, blk in enumerate(nc):
            cbup = order[k // 2]
            for t in blk:
                tk = Task(t, ready=fin[cbup] + 4, due=10**6 + len(flat), deps=([prev] if prev else [])); flat.append(tk); prev = tk
        o9 = []
        for cb in range(4):
            for q9 in range(2):
                t = O9r(cb, q9)
                o9 += [f'v_mul_f32 v{t+r}, v{t+r}, v{vR9[q9]}' for r in range(4)]
                o9 += [f'v_cvt_pk_bf16_f32 v{t}, v{t}, v{t+1}', f'v_cvt_pk_bf16_f32 v{t+1}, v{t+2}, v{t+3}', f'ds_write_b64 v246, v[{t}:{t+1}] offset:{(q9*16+4*cb)*512}']
        o9t = chain(o9, ready=fin[(3, 0)] + 4, due=10**5)
        schedule(P, B, tasks + o9t + flat, stats=stats, lead=LEAD, urgent=URG, burst=3, age=AGE)
        P(f's_waitcnt vmcnt({vm.need(["O0", "O1"])}) lgkmcnt(0)\ns_barrier')
        if w == 0: stamp(P, 'norm_done')
        nc = norm_chain(w, (2, 3), [(cb, up) for cb in range(4) for up in range(4)], [160, 164, 168, 172, 176, 180, 184, 188])
        flat = []; prev = None
        for blk in nc:
            for t in blk:
                tk = Task(t, ready=0, due=10**6 + len(flat), deps=([prev] if prev else [])); flat.append(tk); prev = tk
        out_half(P, 0, stats, vm, extra_tasks=flat)
        P('s_branch L_out1')
        if w < 3: P.label(f'L_tw{w+1}')
    P.lines.append('; ---- out projection: half-stages of wo (64 columns x 256 rows), partial sums -> d_ws')
    P.label('L_out1')
    if FUSE: P(f'v_mov_b32 v{vONE}, 1\nv_mov_b32 v{vZERO}, 0')
    out_half(P, 1, stats, vm)
    stamp(P, 'o1')
    P(f's_mov_b32 s{sCNT}, 3')
    P('.p2align 3')
    P.label('L_oloop')
    ns = []
    for j in range(2, 6):
        if j == 4 and FUSE: publish_stageA(P)
        ns.append(out_half(P, j, stats, vm))
    for t_ in (1, 2):
        ns2 = [out_half(P, j, stats, vm, emit=False) for j in range(2 + 4 * t_, 6 + 4 * t_)]
        assert all(a <= b for a, b in zip(ns, ns2)), (ns, ns2)
    P(f'v_add_u32 v{vDO}, 256, v{vDO}\ns_sub_u32 s{sCNT}, s{sCNT}, 1\ns_cmp_lg_u32 s{sCNT}, 0\ns_cbranch_scc1 L_oloop')
    stamp(P, 'o13')
    P('s_waitcnt lgkmcnt(0)\ns_nop 7')
    cvl, stl = store_lists(0)
    for c in cvl:
        for t in c: P(t)
    for t in stl: P(t)
    stamp(P, 'stores_issued')
    if FUSE: fused_reduce(P)
    else: P('s_waitcnt vmcnt(0)')


S_DBG = 4
vONE, vZERO = 248, 249
def publish_stageA(P):
    P(f's_cmp_lg_u32 s{sCNT}, 1\ns_cbranch_scc1 L_nopubA\ns_cmp_lg_u32 s{sW}, 0\ns_cbranch_scc1 L_nopubA')
    P(f's_mov_b64 exec, 1\nbuffer_store_byte v{vONE}, v{vZERO}, s[{S_DBG}:{S_DBG+3}], s{sPL} offen sc1\ns_mov_b64 exec, -1')
    P.label('L_nopubA')

def fused_reduce(P):
    S_CL, S_OUT = 8, 12
    sK, sCLU, sMASK, sI = 52, 53, 54, 55
    vLANE, vN, vG, vOB = 128, 133, 134, 135
    sPl = [72, 73, 74, 75, 76, 77, 78, 79] if not PROF else [40, 41, 42, 43, 44, 45, 33, 34]
    vI = [140, 141, 142, 143]; vO1 = [144, 145, 146, 147]; vO2 = [148, 149, 150, 151]
    cnt = [0]
    def poll(bit, lab_ok, lab_to):
        c = cnt[0]; cnt[0] += 1
        P(f's_mov_b32 s47, {SPIN}')
        P.label(f'L_fr_poll{c}')
        P(f'buffer_load_ubyte v132, v131, s[{S_DBG}:{S_DBG+3}], s46 offen sc1\ns_waitcnt vmcnt(0)')
        P(f'v_and_b32 v137, {bit}, v132\nv_cmp_ne_u32 vcc, 0, v137\ns_nop 1\ns_cmp_eq_u64 vcc, -1\ns_cbranch_scc1 {lab_ok}')
        P(f's_sleep 1\ns_sub_u32 s47, s47, 1\ns_cmp_lg_u32 s47, 0\ns_cbranch_scc1 L_fr_poll{c}')
        P(f's_branch {lab_to}')
    def job_addr(q, idx_expr, cg0, nmain, cgend, tag):
        P(idx_expr)
        P(f's_cmp_ge_u32 s{sI}, {nmain}\ns_cbranch_scc1 L_fr_t9_{tag}')
        P(f's_lshr_b32 s46, s{sI}, 1\ns_add_u32 s46, s46, {cg0}\ns_and_b32 s47, s{sI}, 1')
        P(f's_lshl_b32 s35, s46, 14\ns_lshl_b32 s36, s{sK}, 11\ns_add_u32 s35, s35, s36\ns_lshl_b32 s36, s47, 10\ns_add_u32 s35, s35, s36')
        P(f'v_lshlrev_b32 v{vI[q]}, 4, v{vLANE}\nv_add_u32 v{vI[q]}, s35, v{vI[q]}')
        P(f's_lshr_b32 s35, s{sK}, 1\ns_and_b32 s36, s{sK}, 1')
        P(f's_lshl_b32 s37, s35, 5\ns_lshl_b32 s36, s36, 4\ns_add_u32 s37, s37, s36\ns_add_u32 s37, s37, s63\ns_mul_i32 s37, s37, 896')
        P(f's_add_u32 s37, s37, s62\ns_lshl_b32 s46, s46, 6\ns_add_u32 s37, s37, s46')
        P(f's_lshl_b32 s47, s47, 1\ns_xor_b32 s47, s47, s35\ns_lshl_b32 s36, s47, 4\ns_add_u32 s36, s36, s37\ns_lshl_b32 s36, s36, 1')
        P(f'v_add_u32 v{vO1[q]}, s36, v{vOB}')
        P(f's_xor_b32 s47, s47, 1\ns_lshl_b32 s36, s47, 4\ns_add_u32 s36, s36, s37\ns_lshl_b32 s36, s36, 1')
        P(f'v_add_u32 v{vO2[q]}, s36, v{vOB}')
        P(f's_branch L_fr_j{tag}')
        P.label(f'L_fr_t9_{tag}')
        P(f's_sub_u32 s46, s{sI}, {nmain}\ns_lshl_b32 s46, s46, 2\ns_add_u32 s46, s46, {cg0}\nv_add_u32 v152, s46, v{vG}')
        P(f's_lshr_b32 s35, s{sK}, 1\ns_and_b32 s36, s{sK}, 1')
        P(f'v_lshlrev_b32 v153, 11, v152\ns_lshl_b32 s37, s35, 9\ns_lshl_b32 s47, s36, 8\ns_add_u32 s37, s37, s47\ns_add_u32 s37, s37, 114688')
        P(f'v_lshlrev_b32 v154, 4, v{vN}\nv_add_u32 v153, v153, v154\nv_add_u32 v153, s37, v153')
        P(f'v_lshlrev_b32 v154, 1, v{vN}\nv_and_b32 v154, 15, v154\nv_lshrrev_b32 v155, 3, v{vN}\ns_lshl_b32 s36, s36, 1\nv_add_u32 v155, s36, v155')
        P(f's_add_u32 s37, s63, 128\nv_add_u32 v154, s37, v154\nv_mul_u32_u24 v154, 896, v154')
        P(f'v_lshlrev_b32 v156, 6, v152\nv_lshlrev_b32 v155, 2, v155\nv_add_u32 v154, v154, v156\nv_add_u32 v154, v154, v155')
        P(f's_lshl_b32 s35, s35, 4\ns_add_u32 s35, s35, s62\nv_add_u32 v154, s35, v154\nv_lshlrev_b32 v154, 1, v154')
        P(f'v_cmp_gt_u32 vcc, {cgend}, v152\nv_mov_b32 v156, 0x7fff0000\ns_nop 0\nv_cndmask_b32 v{vO1[q]}, v156, v154, vcc\nv_cndmask_b32 v{vI[q]}, v156, v153, vcc')
        P(f'v_add_u32 v{vO2[q]}, 1792, v{vO1[q]}')
        P.label(f'L_fr_j{tag}')
    def loads(qs):
        for q in qs:
            for p in range(8):
                d = (q * 8 + p) * 4
                P(f'buffer_load_dwordx4 v[{d}:{d+3}], v{vI[q]}, s[{S_CL}:{S_CL+3}], s{sPl[p]} offen sc1')
    def sums(qs):
        n = len(qs) * 8
        for k, q in enumerate(qs):
            acc = 160
            for p in range(8):
                P(f's_waitcnt vmcnt({n - 1 - (k*8+p) + 2*k})')
                for dd in range(4):
                    src = (q * 8 + p) * 4 + dd
                    if DOT2:
                        c0 = '0' if p == 0 else f'v{acc+2*dd}'; c1 = '0' if p == 0 else f'v{acc+2*dd+1}'
                        P(f'v_dot2_f32_bf16 v{acc+2*dd}, v{src}, v168, {c0}\nv_dot2_f32_bf16 v{acc+2*dd+1}, v{src}, v169, {c1}')
                    elif p == 0:
                        P(f'v_lshlrev_b32 v{acc+2*dd}, 16, v{src}\nv_and_b32 v{acc+2*dd+1}, 0xffff0000, v{src}')
                    else:
                        P(f'v_lshlrev_b32 v170, 16, v{src}\nv_and_b32 v171, 0xffff0000, v{src}\nv_add_f32 v{acc+2*dd}, v{acc+2*dd}, v170\nv_add_f32 v{acc+2*dd+1}, v{acc+2*dd+1}, v171')
            o = 172 + 4 * (k & 1)
            for dd in range(4): P(f'v_cvt_pk_bf16_f32 v{o+dd}, v{acc+2*dd}, v{acc+2*dd+1}')
            P(f'buffer_store_dwordx2 v[{o}:{o+1}], v{vO1[q]}, s[{S_OUT}:{S_OUT+3}], 0 offen')
            P(f'buffer_store_dwordx2 v[{o+2}:{o+3}], v{vO2[q]}, s[{S_OUT}:{S_OUT+3}], 0 offen')
    def bcast_write(sreg, o=0): P(f'v_mov_b32 v129, s{sreg}\nv_mov_b32 v130, {SCR+o}\nds_write_b32 v130, v129\ns_waitcnt lgkmcnt(0)')
    def bcast_read(sreg, o=0): P(f'v_mov_b32 v130, {SCR+o}\nds_read_b32 v129, v130\ns_waitcnt lgkmcnt(0)\nv_readfirstlane_b32 s{sreg}, v129')
    def set_flag(val):
        P(f'v_mov_b32 v129, {val}\ns_mov_b64 exec, 1\nbuffer_store_byte v129, v{vZERO}, s[{S_DBG}:{S_DBG+3}], s{sPL} offen sc1\ns_waitcnt vmcnt(0)\ns_mov_b64 exec, -1')
    vIB = [157, 158]; vO1B = [176 + 4, 176 + 5]; vO2B = [182, 183]
    P('s_load_dwordx2 s[56:57], s[0:1], 80\ns_load_dwordx2 s[60:61], s[0:1], 96')
    P(f's_lshr_b32 s{sCLU}, s{sPL}, 3\ns_and_b32 s{sK}, s{sPL}, 7')
    P(f'v_mbcnt_lo_u32_b32 v{vLANE}, -1, 0\nv_mbcnt_hi_u32_b32 v{vLANE}, -1, v{vLANE}')
    P(f'v_and_b32 v131, 7, v{vLANE}\ns_lshl_b32 s48, s{sCLU}, 3')
    P(f's_cmp_lg_u32 s{sW}, 0\ns_cbranch_scc1 L_fr_nolook')
    P(f'buffer_load_ubyte v132, v131, s[{S_DBG}:{S_DBG+3}], s48 offen sc1')
    P.label('L_fr_nolook')
    P(f'v_and_b32 v{vN}, 15, v{vLANE}\nv_lshrrev_b32 v{vG}, 4, v{vLANE}')
    P(f'v_mul_u32_u24 v{vOB}, 1792, v{vN}\nv_lshlrev_b32 v136, 3, v{vG}\nv_add_u32 v{vOB}, v{vOB}, v136')
    P(f's_lshr_b32 s62, s{sCLU}, 4\ns_and_b32 s63, s{sCLU}, 15\ns_mul_i32 s63, s63, 144\ns_mul_i32 s62, s62, 448')
    for p in range(8): P(f's_mov_b32 s{sPl[p]}, {p*PLANE}')
    P('v_mov_b32 v168, 0x3f80\nv_mov_b32 v169, 0x3f800000')
    P('s_waitcnt lgkmcnt(0)')
    P(f's_mul_i32 s46, s{sCLU}, {8*PLANE}\ns_add_u32 s60, s60, s46\ns_addc_u32 s61, s61, 0')
    srd(P, S_CL, 60, 61, 8 * PLANE)
    srd(P, S_OUT, 56, 57, 16 * 144 * 896 * 2)
    for q in range(3): job_addr(q, f's_add_u32 s{sI}, s{sW}, {4*q}', 0, 8, 4, f'a{q}')
    sv = (list(vI), list(vO1), list(vO2))
    vI[:2] = vIB; vO1[:2] = vO1B; vO2[:2] = vO2B
    for q in range(2): job_addr(q, f's_add_u32 s{sI}, s{sW}, {4*q}', 4, 6, 7, f'b{q}')
    svB = (list(vI), list(vO1), list(vO2))
    vI[:], vO1[:], vO2[:] = sv
    P(f's_mov_b32 s{sMASK}, 0')
    P(f's_cmp_lg_u32 s{sW}, 0\ns_cbranch_scc1 L_fr_a_join')
    P('s_waitcnt vmcnt(0)')
    P(f'v_and_b32 v137, 1, v132\nv_cmp_ne_u32 vcc, 0, v137\ns_nop 1\ns_cmp_eq_u64 vcc, -1\ns_cbranch_scc1 L_fr_a_ok')
    P('s_mov_b32 s46, s48')
    poll(1, 'L_fr_a_ok', 'L_fr_a_to')
    P.label('L_fr_a_to'); P(f's_mov_b32 s{sMASK}, 1\ns_branch L_fr_a_pub')
    P.label('L_fr_a_ok')
    P(f'v_and_b32 v137, 2, v132\nv_cmp_ne_u32 vcc, 0, v137\nv_cmp_eq_u32 s[56:57], s{sK}, v131\ns_nop 1\ns_or_b64 vcc, vcc, s[56:57]')
    P(f's_cmp_eq_u64 vcc, -1\ns_cbranch_scc0 L_fr_a_pub')
    P(f'v_and_b32 v137, 4, v132\nv_cmp_ne_u32 vcc, 0, v137\ns_nop 1\ns_and_b32 s{sMASK}, vcc_lo, 0xff\ns_or_b32 s{sMASK}, s{sMASK}, 0x200')
    P.label('L_fr_a_pub'); bcast_write(sMASK)
    P.label('L_fr_a_join')
    P('s_waitcnt vmcnt(0)\ns_barrier')
    bcast_read(sMASK)
    P(f's_cmp_eq_u32 s{sMASK}, 1\ns_cbranch_scc1 L_fr_generic')
    stamp(P, 'fr_apolled')
    P(f's_cmp_lg_u32 s{sW}, 0\ns_cbranch_scc1 L_fr_pub_done')
    P(f'v_mov_b32 v129, 3\ns_mov_b64 exec, 1\nbuffer_store_byte v129, v{vZERO}, s[{S_DBG}:{S_DBG+3}], s{sPL} offen sc1\ns_mov_b64 exec, -1')
    P.label('L_fr_pub_done')
    P(f's_cmp_eq_u32 s{sMASK}, 0\ns_cbranch_scc1 L_fr_staged')
    P(f's_and_b32 s{sMASK}, s{sMASK}, 0xff\ns_lshl_b32 s46, 1, s{sK}\ns_or_b32 s{sMASK}, s{sMASK}, s46\ns_branch L_fr_shares')
    P.label('L_fr_staged')
    loads(range(3))
    sums(list(range(3)))
    stamp(P, 'fr_sumA')
    P(f's_cmp_lg_u32 s{sW}, 0\ns_cbranch_scc1 L_fr_b_join')
    P('s_mov_b32 s46, s48')
    poll(2, 'L_fr_b_ok', 'L_fr_b_to')
    P.label('L_fr_b_to')
    set_flag(7)
    P(f'buffer_load_ubyte v132, v131, s[{S_DBG}:{S_DBG+3}], s46 offen sc1\ns_waitcnt vmcnt(0)')
    P(f'v_and_b32 v137, 2, v132\nv_cmp_ne_u32 vcc, 0, v137\ns_nop 1\ns_mov_b32 s{sMASK}, 0x100\ns_cmp_eq_u64 vcc, -1\ns_cbranch_scc0 L_fr_b_pub')
    P.label('L_fr_b_ok')
    P(f'v_and_b32 v137, 4, v132\nv_cmp_ne_u32 vcc, 0, v137\ns_nop 1\ns_and_b32 s{sMASK}, vcc_lo, 0xff')
    P.label('L_fr_b_pub'); bcast_write(sMASK, 4)
    P.label('L_fr_b_join')
    P('s_barrier'); bcast_read(sMASK, 4)
    P(f's_cmp_eq_u32 s{sMASK}, 0x100\ns_cbranch_scc1 L_fr_end')
    stamp(P, 'fr_bpolled')
    vI[:], vO1[:], vO2[:] = svB
    loads(range(2))
    sums(list(range(2)))
    vI[:], vO1[:], vO2[:] = sv
    P(f's_cmp_eq_u32 s{sMASK}, 0\ns_cbranch_scc1 L_fr_end')
    P('s_waitcnt vmcnt(0)\ns_branch L_fr_shares')
    P.label('L_fr_generic')
    P('s_waitcnt vmcnt(0)\ns_barrier')
    P(f's_cmp_lg_u32 s{sW}, 0\ns_cbranch_scc1 L_fr_g_join')
    set_flag(3)
    P('s_mov_b32 s46, s48')
    poll(2, 'L_fr_g_ok', 'L_fr_g_to')
    P.label('L_fr_g_to')
    set_flag(7)
    P(f'buffer_load_ubyte v132, v131, s[{S_DBG}:{S_DBG+3}], s46 offen sc1\ns_waitcnt vmcnt(0)')
    P(f'v_and_b32 v137, 2, v132\nv_cmp_ne_u32 vcc, 0, v137\ns_nop 1\ns_mov_b32 s{sMASK}, 0\ns_cmp_eq_u64 vcc, -1\ns_cbranch_scc0 L_fr_g_pub')
    P.label('L_fr_g_ok')
    P(f'v_and_b32 v137, 4, v132\nv_cmp_ne_u32 vcc, 0, v137\ns_nop 1\ns_and_b32 s{sMASK}, vcc_lo, 0xff\ns_lshl_b32 s46, 1, s{sK}\ns_or_b32 s{sMASK}, s{sMASK}, s46')
    P.label('L_fr_g_pub'); bcast_write(sMASK, 8)
    P.label('L_fr_g_join')
    P('s_barrier'); bcast_read(sMASK, 8)
    P.label('L_fr_shares')
    P(f's_mov_b32 s{sK}, 0')
    P.label('L_fr_share')
    P(f's_lshr_b32 s46, s{sMASK}, s{sK}\ns_and_b32 s46, s46, 1\ns_cmp_eq_u32 s46, 0\ns_cbranch_scc1 L_fr_next')
    for q in range(4): job_addr(q, f's_lshl_b32 s{sI}, s{sW}, 2\ns_add_u32 s{sI}, s{sI}, {q}', 0, 14, 7, f'g{q}')
    loads(range(4))
    sums(list(range(4)))
    P('s_waitcnt vmcnt(0)')
    P.label('L_fr_next')
    P(f's_add_u32 s{sK}, s{sK}, 1\ns_cmp_lt_u32 s{sK}, 8\ns_cbranch_scc1 L_fr_share')
    P.label('L_fr_end')
    P('s_waitcnt vmcnt(0)')

RU = int(OPT.get('ru', 1))
RBLK = int(OPT.get('rblk', 256))
RGRID = 1008 // RU * 256 // RBLK
def reduce_kernel(P):
    P.label('reduce_kernel')
    DBGCOPY = ''
    if OPT.get('dbgout'):
        DBGCOPY = ('s_cmp_lg_u32 s2, 0\ns_cbranch_scc1 R_nodbg\ns_load_dwordx2 s[24:25], s[0:1], 88\ns_waitcnt lgkmcnt(0)\ns_sub_u32 s26, s24, 512\ns_subb_u32 s27, s25, 0\n'
                   'v_and_b32 v9, 15, v0\nv_lshlrev_b32 v9, 2, v9\nglobal_load_dword v10, v9, s[26:27] sc1\ns_waitcnt vmcnt(0)\nglobal_store_dword v9, v10, s[24:25]\ns_waitcnt vmcnt(0)\nR_nodbg:')
    P(f"""
s_cmp_ge_u32 s2, {RGRID}
s_cbranch_scc0 R_go
s_endpgm
R_go:
{DBGCOPY}
s_load_dwordx2 s[4:5], s[0:1], 96
s_load_dwordx2 s[6:7], s[0:1], 80
s_lshl_b32 s3, s2, {RBLK.bit_length()-1}
v_add_u32 v1, s3, v0
s_mov_b32 s8, {(2**32 + 8064 - 1)//8064}
s_mov_b32 s9, {8*PLANE}
""")
    for p in range(8): P(f's_mov_b32 s{24+p}, {p*PLANE}')
    D0 = 32
    UB = [2 + 3 * k for k in range(RU)]
    for k in range(RU):
        b = UB[k]
        P(f'v_add_u32 v20, {k * (258048 // RU)}, v1\nv_mul_hi_u32 v{b}, v20, s8\nv_mul_u32_u24 v{b+1}, 8064, v{b}\nv_sub_u32 v{b+1}, v20, v{b+1}')
        P(f'v_mul_lo_u32 v{b+2}, v{b}, s9\nv_lshlrev_b32 v21, 4, v{b+1}\nv_add_u32 v{b+2}, v{b+2}, v21')
    P(f"""
s_waitcnt lgkmcnt(0)
s_mov_b32 s12, s4
s_and_b32 s13, s5, 0xffff
s_mov_b32 s14, {256*PLANE}
s_mov_b32 s15, 0x20000
s_mov_b32 s16, s6
s_and_b32 s17, s7, 0xffff
s_mov_b32 s18, {16*144*896*2}
s_mov_b32 s19, 0x20000
""")
    for k in range(RU):
        for p in range(8):
            d = D0 + (k * 8 + p) * 4
            P(f'buffer_load_dwordx4 v[{d}:{d+3}], v{UB[k]+2}, s[12:15], s{24+p} offen {OPT.get("rednt", "")}')
    T = D0 + RU * 32
    O1 = [T + 2 * k for k in range(RU)]
    t = T + 2 * RU
    for k in range(RU):
        pb, r = UB[k], UB[k] + 1
        o1, o2 = O1[k], O1[k] + 1
        P(f"""
v_and_b32 v{t}, 63, v{r}
v_lshrrev_b32 v{t+1}, 6, v{r}
v_and_b32 v{t+2}, 1, v{t+1}
v_lshrrev_b32 v{t+3}, 1, v{t+1}
v_and_b32 v{t+3}, 1, v{t+3}
v_lshrrev_b32 v{t+4}, 2, v{t+1}
v_and_b32 v{t+4}, 3, v{t+4}
v_lshrrev_b32 v{t+5}, 4, v{t+1}
v_and_b32 v{t+6}, 15, v{t}
v_lshrrev_b32 v{t+7}, 4, v{t}
v_lshlrev_b32 v{o1}, 5, v{t+4}
v_lshlrev_b32 v{t+8}, 4, v{t+3}
v_add_u32 v{o1}, v{o1}, v{t+8}
v_add_u32 v{o1}, v{o1}, v{t+6}
v_lshlrev_b32 v{t+8}, 1, v{t+2}
v_xor_b32 v{t+8}, v{t+8}, v{t+4}
v_lshlrev_b32 v{t+9}, 4, v{t+8}
v_xor_b32 v{t+8}, 1, v{t+8}
v_lshlrev_b32 v{t+10}, 4, v{t+8}
v_lshlrev_b32 v{t+8}, 6, v{t+5}
v_lshlrev_b32 v{t+11}, 2, v{t+7}
v_add_u32 v{t+8}, v{t+8}, v{t+11}
v_add_u32 v{t+9}, v{t+9}, v{t+8}
v_add_u32 v{t+10}, v{t+10}, v{t+8}
v_mov_b32 v{o2}, v{o1}
v_subrev_u32 v{t}, 7168, v{r}
v_lshrrev_b32 v{t+1}, 5, v{t}
v_and_b32 v{t+2}, 31, v{t}
v_lshlrev_b32 v{t+2}, 1, v{t+2}
v_and_b32 v{t+3}, 15, v{t+2}
v_lshrrev_b32 v{t+4}, 4, v{t+2}
v_and_b32 v{t+5}, 3, v{t+1}
v_lshrrev_b32 v{t+6}, 2, v{t+1}
v_lshlrev_b32 v{t+6}, 6, v{t+6}
v_lshlrev_b32 v{t+5}, 4, v{t+5}
v_add_u32 v{t+6}, v{t+6}, v{t+5}
v_lshlrev_b32 v{t+4}, 2, v{t+4}
v_add_u32 v{t+6}, v{t+6}, v{t+4}
v_add_u32 v{t+3}, 128, v{t+3}
v_add_u32 v{t+7}, 1, v{t+3}
v_cmp_le_u32 vcc, 7168, v{r}
s_nop 1
v_cndmask_b32 v{o1}, v{o1}, v{t+3}, vcc
v_cndmask_b32 v{o2}, v{o2}, v{t+7}, vcc
v_cndmask_b32 v{t+9}, v{t+9}, v{t+6}, vcc
v_cndmask_b32 v{t+10}, v{t+10}, v{t+6}, vcc
v_lshrrev_b32 v{t}, 4, v{pb}
v_and_b32 v{t+1}, 15, v{pb}
v_mul_u32_u24 v{t+1}, 144, v{t+1}
v_mul_u32_u24 v{t}, 448, v{t}
v_add_u32 v{o1}, v{o1}, v{t+1}
v_add_u32 v{o2}, v{o2}, v{t+1}
v_mul_u32_u24 v{o1}, 896, v{o1}
v_mul_u32_u24 v{o2}, 896, v{o2}
v_add_u32 v{o1}, v{o1}, v{t}
v_add_u32 v{o2}, v{o2}, v{t}
v_add_u32 v{o1}, v{o1}, v{t+9}
v_add_u32 v{o2}, v{o2}, v{t+10}
v_lshlrev_b32 v{o1}, 1, v{o1}
v_lshlrev_b32 v{o2}, 1, v{o2}
""")
    acc = t; tm = t + 8; oo = t + 10
    for k in range(RU):
        for p in range(8):
            P(f's_waitcnt vmcnt({RU*8 - 1 - (k*8+p) + 2*k})')
            for d in range(4):
                src = D0 + (k * 8 + p) * 4 + d
                if p == 0:
                    P(f'v_lshlrev_b32 v{acc+2*d}, 16, v{src}\nv_and_b32 v{acc+2*d+1}, 0xffff0000, v{src}')
                else:
                    P(f'v_lshlrev_b32 v{tm}, 16, v{src}\nv_and_b32 v{tm+1}, 0xffff0000, v{src}\nv_add_f32 v{acc+2*d}, v{acc+2*d}, v{tm}\nv_add_f32 v{acc+2*d+1}, v{acc+2*d+1}, v{tm+1}')
        o = oo + 4 * (k & 1)
        o += o & 1
        for d in range(4): P(f'v_cvt_pk_bf16_f32 v{o+d}, v{acc+2*d}, v{acc+2*d+1}')
        P(f'buffer_store_dwordx2 v[{o}:{o+1}], v{O1[k]}, s[16:19], 0 offen')
        P(f'buffer_store_dwordx2 v[{o+2}:{o+3}], v{O1[k]+1}, s[16:19], 0 offen')
    P('s_waitcnt vmcnt(0)\ns_endpgm')
    P.label('R_end')
    global RVGPR
    RVGPR = ((oo + 10 + 7) // 8) * 8

HEADER = open('header.txt').read()

def dump_regs(P, regs, acc=False, base=0):
    P('v_mbcnt_lo_u32_b32 v253, -1, 0\nv_mbcnt_hi_u32_b32 v253, -1, v253')
    P(f's_lshl_b32 s{sT0}, s{sW}, 6\nv_add_u32 v253, s{sT0}, v253\nv_lshlrev_b32 v253, 2, v253')
    for k, r in enumerate(regs):
        P(f's_mov_b32 s{sT0}, {base + k*1024}')
        if acc:
            P(f'v_accvgpr_read_b32 v254, a{r}\ns_nop 1\nbuffer_store_dword v254, v253, s[{SRD_WS}:{SRD_WS+3}], s{sT0} offen')
        else:
            P(f'buffer_store_dword v{r}, v253, s[{SRD_WS}:{SRD_WS+3}], s{sT0} offen')
    P('s_waitcnt vmcnt(0)')

def dump_lds(P, off, nbytes, base):
    P('v_mbcnt_lo_u32_b32 v253, -1, 0\nv_mbcnt_hi_u32_b32 v253, -1, v253')
    P(f's_lshl_b32 s{sT0}, s{sW}, 6\nv_add_u32 v253, s{sT0}, v253\nv_lshlrev_b32 v253, 2, v253')
    P(f'v_add_u32 v252, {off}, v253')
    for k in range(nbytes // 1024):
        P(f'ds_read_b32 v254, v252 offset:{k*1024}\ns_waitcnt lgkmcnt(0)\ns_mov_b32 s{sT0}, {base + k*1024}')
        P(f'buffer_store_dword v254, v253, s[{SRD_WS}:{SRD_WS+3}], s{sT0} offen\ns_waitcnt vmcnt(0)')

def slow_path(P, stats):
    vM = [160, 161, 162, 163]; vM9 = 164; tmp = 165
    S0 = vX[1]
    poolA = POOL + [vP9f, vP9f + 4]
    st_ = {}
    P.lines.append('; ---- fallback: pass 1 = true row maxima, pass 2 = attention with P = exp2(S - max); rejoins at L_tail')
    P.label('L_slow')
    P(f's_mov_b32 s{sSLOW}, 1')
    P(f's_cmp_eq_u32 s{sB}, 1\ns_cbranch_scc1 L_slow1')
    for kt9 in range(2):
        if kt9 == 1: P.label('L_slow1')
        for r in vM + [vM9]: P(f'v_mov_b32 v{r}, 0xff800000')
        P(f's_mov_b32 s{sKV}, 0\ns_mov_b32 s{sCNT}, 32')
        P.label(f'L_smax{kt9}')
        for t in dmaKV('K', sKV, 0): P(t)
        P('s_waitcnt vmcnt(0)\ns_barrier')
        A, _ = phaseA_items(0, kt9, poolA, kslot=0, S0=S0, noentry=True)
        schedule(P, A, [], stats=st_, lead=LEAD, urgent=URG, burst=3)
        P('s_nop 7')
        for qt in range(4):
            for S in (Sr(S0, qt), Sr(vY, qt)):
                P(f'v_max3_f32 v{vM[qt]}, v{vM[qt]}, v{S}, v{S+1}\nv_max3_f32 v{vM[qt]}, v{vM[qt]}, v{S+2}, v{S+3}')
        P(f'v_max3_f32 v{vM9}, v{vM9}, v{vS9}, v{vS9+1}\nv_max3_f32 v{vM9}, v{vM9}, v{vS9+2}, v{vS9+3}')
        P(f's_waitcnt lgkmcnt(0)\ns_barrier')
        P(f's_add_u32 s{sKV}, s{sKV}, 16384\ns_sub_u32 s{sCNT}, s{sCNT}, 1\ns_cmp_lg_u32 s{sCNT}, 0\ns_cbranch_scc1 L_smax{kt9}')
        for r in vM + [vM9]: reduce4(P, r, tmp, op='v_max_f32')
        P(f'v_mbcnt_lo_u32_b32 v{tmp}, -1, 0\nv_mbcnt_hi_u32_b32 v{tmp}, -1, v{tmp}\nv_lshlrev_b32 v{tmp}, 2, v{tmp}')
        P(f's_lshl_b32 s{sT0}, s{sW}, 8\ns_add_u32 s{sT0}, s{sT0}, {SCR}\nv_add_u32 v{tmp+1}, s{sT0}, v{tmp}')
        P(f's_xor_b32 s{sT0}, s{sW}, 1\ns_lshl_b32 s{sT0}, s{sT0}, 8\ns_add_u32 s{sT0}, s{sT0}, {SCR}\nv_add_u32 v{tmp+2}, s{sT0}, v{tmp}')
        P(f'ds_write_b32 v{tmp+1}, v{vM9}\ns_waitcnt lgkmcnt(0)\ns_barrier\nds_read_b32 v{tmp+3}, v{tmp+2}\ns_waitcnt lgkmcnt(0)\nv_max_f32 v{vM9}, v{vM9}, v{tmp+3}')
        for r in range(256): P(f'v_accvgpr_write_b32 a{r}, 0')
        for r in range(32): P(f'v_mov_b32 v{vO9+r}, 0')
        for r in vL + [vL9]: P(f'v_mov_b32 v{r}, 0')
        P(f's_mov_b32 s{sKV}, 0\ns_mov_b32 s{sCNT}, 32')
        P.label(f'L_sloop{kt9}')
        P(f's_add_u32 s{sT3}, s{sKV}, 16384')
        for t in dmaKV('K', sKV, 0): P(t)
        for t in dmaKV('V', sT3, 2): P(t)
        P('s_waitcnt vmcnt(0)\ns_barrier')
        A, _ = phaseA_items(0, kt9, poolA, kslot=0, S0=S0, noentry=True)
        schedule(P, A, [], stats=st_, lead=LEAD, urgent=URG, burst=3)
        P('s_nop 7')
        def sm(src, dst2, l, m):
            for r in range(4): P(f'v_sub_f32 v{src+r}, v{src+r}, v{m}')
            for r in range(4): P(f'v_exp_f32 v{src+r}, v{src+r}')
            P('s_nop 0')
            for r in range(4): P(f'v_add_f32 v{l}, v{l}, v{src+r}')
            P(f'v_cvt_pk_bf16_f32 v{dst2}, v{src}, v{src+1}\nv_cvt_pk_bf16_f32 v{dst2+1}, v{src+2}, v{src+3}')
        for qt in range(4):
            sm(Sr(S0, qt), Sr(S0, qt), vL[qt], vM[qt])
            sm(Sr(vY, qt), Sr(S0, qt) + 2, vL[qt], vM[qt])
        sm(vS9, vS9, vL9, vM9)
        P(f'ds_write_b64 v{vP9w}, v[{vS9}:{vS9+1}] offset:2048')
        P('s_waitcnt lgkmcnt(0)\ns_barrier')
        P(f's_sub_u32 s{sCNT}, s{sCNT}, 1\ns_cmp_eq_u32 s{sCNT}, 0\ns_cbranch_scc0 L_spv{kt9}\ns_branch L_tail')
        P.label(f'L_spv{kt9}')
        B = phaseB_items(3)
        schedule(P, B, [], stats=st_, lead=LEAD, urgent=URG, burst=3)
        P('s_waitcnt lgkmcnt(0)\ns_barrier')
        P(f's_add_u32 s{sKV}, s{sKV}, 16384\ns_branch L_sloop{kt9}')

DOC = '''; ---------------------------------------------------------------------------------------------------------------
; ---------------------------------------------------------------------------------------------------------------'''

def main():
    P = Prog(); stats = {}
    kname = NAME + '_kernel'
    P.label(kname)
    setup(P); stamp(P, 'start'); lane_consts(P)
    segdone = qproj(P, stats)
    stamp(P, 'qproj_done')
    if segdone:
        pass
    elif DEBUG == 'q':
        dump_regs(P, list(range(128)))
        dump_lds(P, Q9B, 16384, 131072)
        P('s_endpgm')
    else:
        attention(P, stats)
        tail_and_out(P, stats)
        stamp(P, 'out_done')
        stamp_flush(P)
        P('s_endpgm')
        slow_path(P, stats)
        P.label('L_kend')
    lines, nfix = check_hazards(P.lines, verbose=bool(OPT.get('v')))
    if not OPT.get("seg"): check_waits(lines)
    R = Prog(); reduce_kernel(R)
    rl, nf2 = check_hazards(R.lines)
    check_waits(rl)
    if PROF: print('stamps', STN, file=sys.stderr)
    print('stats', stats, 'hazard nops', nfix, nf2, 'instrs', len(lines), file=sys.stderr)
    out = [HEADER.rstrip('\n')]
    if PROF: out.append('; STAMPS ' + ','.join(STN))
    if FUSE and not OPT.get('aslist'):
        out.append(f'; @launch grid=(256,1,1) block=(256,1,1) lds={LDS_TOTAL}')
    else:
        out.append(f'; @launch kernel={kname} grid=(256,1,1) block=(256,1,1) lds={LDS_TOTAL}')
        if not DEBUG and not FUSE: out.append(f'; @launch kernel=reduce_kernel grid=({RGRID},1,1) block=({RBLK},1,1) lds=0')
    out.append(DOC)
    out.append('.amdgcn_target "amdgcn-amd-amdhsa--gfx950"\n.text')
    out.append(f'.globl {kname}\n.p2align 8\n.type {kname},@function')
    out += lines
    if not FUSE:
        out.append('.globl reduce_kernel\n.p2align 8\n.type reduce_kernel,@function')
        out += rl
    out.append('.section .rodata,"a"')
    for nm, vg, acc, sg in ((kname, 512, 256, 102 if PROF else 96), ('reduce_kernel', RVGPR, RVGPR, 40))[:(1 if FUSE else 2)]:
        out.append(f""".p2align 6
.amdhsa_kernel {nm}
  .amdhsa_next_free_vgpr {vg}
  .amdhsa_next_free_sgpr {sg}
  .amdhsa_accum_offset {acc}
  .amdhsa_group_segment_fixed_size 0
  .amdhsa_kernarg_size 104
  .amdhsa_user_sgpr_count 2
  .amdhsa_user_sgpr_kernarg_segment_ptr 1
  .amdhsa_system_sgpr_workgroup_id_x 1
.end_amdhsa_kernel""")
    dst = OPT.get('o', 'cdna_kernels/' + NAME + '.s')
    open(dst, 'w').write('\n'.join(out) + '\n')

main()
```
